```python
import torch

def _softmax(x, axis=-1):
    return torch.softmax(x, dim=axis)
def _gelu(x):
    return torch.nn.functional.gelu(x, approximate="tanh")
def _silu(x):
    return torch.nn.functional.silu(x)
def _sigmoid(x):
    return torch.sigmoid(x)
def _layernorm(x, axis=-1, eps=1e-5):
    m = x.mean(dim=axis, keepdim=True)
    v = x.var(dim=axis, keepdim=True, unbiased=False)
    return (x - m) / torch.sqrt(v + eps)
def _scatter_add(tgt, idx, src, axis=0):
    return tgt.clone().index_add_(axis, idx, src)
def _segment_sum(src, seg, n):
    out = torch.zeros((n,) + src.shape[1:], dtype=src.dtype)
    return out.index_add_(0, seg, src)
def _pad(x, pw):
    flat = tuple(v for pair in reversed(pw) for v in pair)
    return torch.nn.functional.pad(x, flat)

kernel_name = 'parallel_sum__compressed_kv_cla__glu_gated_geglu__decode'

def setup_inputs():

    _w = (lambda a: (lambda t: t.to(torch.bfloat16) if t.is_floating_point() else t)(torch.as_tensor(a)))
    def _A_setup():
        B, H, Sq, Sk, D, M = 4, 32, 1, 4096, 128, 512
        Dc = 4 * D
        return {
            "x": _w((lambda *s: torch.randn(*s, dtype=torch.bfloat16) * 0.05)(B, Sq, M)),
            "c_kv": _w((lambda *s: torch.randn(*s, dtype=torch.bfloat16) * 0.8)(B, Sk, Dc)),
            "w_q": _w((lambda *s: torch.randn(*s, dtype=torch.bfloat16) * 1.6)(M, H, D) * (M ** -0.5)),
            "w_uk": _w((lambda *s: torch.randn(*s, dtype=torch.bfloat16) * 1.6)(Dc, H, D) * (Dc ** -0.5)),
            "w_uv": _w((lambda *s: torch.randn(*s, dtype=torch.bfloat16) * 0.8)(Dc, H, D) * (Dc ** -0.5)),
            "w_o": _w((lambda *s: torch.randn(*s, dtype=torch.bfloat16) * 0.8)(H, D, M) * ((H * D) ** -0.5)),
        }
    _A_in = _A_setup()

    def _B_setup():
        B, S, Dm, Df = 4, 1, 512, 1792
        return {
            "x": _w((lambda *s: torch.randn(*s, dtype=torch.bfloat16) * 0.05)(B, S, Dm)),
            "w_gate": _w((lambda *s: torch.randn(*s, dtype=torch.bfloat16) * 0.4)(Dm, Df) * (Dm ** -0.5)),
            "w_up": _w((lambda *s: torch.randn(*s, dtype=torch.bfloat16) * 0.4)(Dm, Df) * (Dm ** -0.5)),
            "w_down": _w((lambda *s: torch.randn(*s, dtype=torch.bfloat16) * 0.4)(Df, Dm) * (Df ** -0.5)),
        }
    _B_in = _B_setup()

    return {
        "A_x": _A_in["x"],
        "A_c_kv": _A_in["c_kv"],
        "A_w_q": _A_in["w_q"],
        "A_w_uk": _A_in["w_uk"],
        "A_w_uv": _A_in["w_uv"],
        "A_w_o": _A_in["w_o"],
        "B_x": _B_in["x"],
        "B_w_gate": _B_in["w_gate"],
        "B_w_up": _B_in["w_up"],
        "B_w_down": _B_in["w_down"],
    }

def reference(A_x, A_c_kv, A_w_q, A_w_uk, A_w_uv, A_w_o, B_x, B_w_gate, B_w_up, B_w_down):
    def _A_ref(x, c_kv, w_q, w_uk, w_uv, w_o):
        B, Sq, M = x.shape[0], x.shape[1], x.shape[2]
        Sk = c_kv.shape[1]
        H, D = w_q.shape[1], w_q.shape[2]
        q = torch.einsum("bqm,mhd->bhqd", x, w_q)
        k = torch.einsum("bkc,chd->bhkd", c_kv, w_uk)
        v = torch.einsum("bkc,chd->bhkd", c_kv, w_uv)
        scores = torch.einsum("bhqd,bhkd->bhqk", q, k) * (D ** -0.5)
        off = Sk - Sq
        qi = torch.arange(Sq)[:, None]
        kj = torch.arange(Sk)[None, :]
        cmask = kj <= (qi + off)
        scores = torch.where(cmask[None, None], scores, -1e9)
        p = _softmax(scores, axis=-1)
        ctx = torch.einsum("bhqk,bhkd->bhqd", p, v)
        return torch.einsum("bhqd,hdm->bqm", ctx, w_o)

    def _B_ref(x, w_gate, w_up, w_down):
        g = torch.einsum("bsd,df->bsf", x, w_gate)
        u = torch.einsum("bsd,df->bsf", x, w_up)
        h = _gelu(g) * u
        return torch.einsum("bsf,fd->bsd", h, w_down)

    x = A_x
    xn = _layernorm(x, axis=-1)
    return x + _A_ref(xn, A_c_kv, A_w_q, A_w_uk, A_w_uv, A_w_o) + _B_ref(xn, B_w_gate, B_w_up, B_w_down)
```

```python
import re

TRANS = ('v_exp_f32', 'v_log_f32', 'v_rcp_f32', 'v_rsq_f32', 'v_sqrt_f32', 'v_sin_f32', 'v_cos_f32')


def regs_of(op):
    op = op.strip()
    op = op.lstrip('-')
    m = re.fullmatch(r'abs\((.*)\)', op)
    if m:
        op = m.group(1)
    op = op.strip('|')
    m = re.fullmatch(r'([vas])(\d+)', op)
    if m:
        return {(m.group(1), int(m.group(2)))}
    m = re.fullmatch(r'([vas])\[(\d+):(\d+)\]', op)
    if m:
        return {(m.group(1), i) for i in range(int(m.group(2)), int(m.group(3)) + 1)}
    if op in ('vcc', 'vcc_lo', 'vcc_hi'):
        return {('s', 'vcc')}
    if op in ('exec', 'exec_lo', 'exec_hi'):
        return {('s', 'exec')}
    if op == 'm0':
        return {('s', 'm0')}
    return set()


def split_ops(s):
    out, depth, cur = [], 0, ''
    for ch in s:
        if ch in '[(':
            depth += 1
        if ch in '])':
            depth -= 1
        if ch == ',' and depth == 0:
            out.append(cur.strip())
            cur = ''
        else:
            cur += ch
    if cur.strip():
        out.append(cur.strip())
    return out


class Ins:
    def __init__(self, text):
        self.text = text
        t = text.split(';')[0].strip()
        self.label = t.endswith(':')
        self.directive = t.startswith('.')
        self.defs, self.uses = set(), set()
        self.kind = 'other'
        self.srcc = set()
        self.passes = 0
        self.dpp = False
        self.store_data = set()
        self.states = 1
        if self.label or self.directive or not t:
            self.states = 0
            self.op = ''
            return
        parts = t.split(None, 1)
        self.op = op = parts[0]
        rest = parts[1] if len(parts) > 1 else ''
        ops = split_ops(rest)
        clean = []
        for o in ops:
            clean.append(o.split()[0] if o.split() else o)
        mods = rest
        if op == 's_nop':
            self.states = int(rest, 0) + 1
            return
        if op.startswith('v_mfma'):
            self.kind = 'mfma'
            self.defs = regs_of(clean[0])
            self.uses = regs_of(clean[1]) | regs_of(clean[2]) | regs_of(clean[3])
            self.srcab = regs_of(clean[1]) | regs_of(clean[2])
            self.srcc = regs_of(clean[3])
            self.passes = 8 if '32x32' in op else 4
        elif op.startswith('v_'):
            self.kind = 'valu'
            self.dpp = '_dpp' in op
            if op.startswith('v_permlane') or op.startswith('v_swap'):
                self.defs = regs_of(clean[0]) | regs_of(clean[1])
                self.uses = set(self.defs)
            elif op.startswith(('v_add_co', 'v_sub_co', 'v_addc_co', 'v_subb_co', 'v_mad_u64')):
                self.defs = regs_of(clean[0]) | regs_of(clean[1])
                for o in clean[2:]:
                    self.uses |= regs_of(o)
            else:
                self.defs = regs_of(clean[0])
                for o in clean[1:]:
                    self.uses |= regs_of(o)
                if op.startswith(('v_fmac', 'v_dot2c', 'v_writelane')) or self.dpp:
                    self.uses |= self.defs
                if op.startswith('v_cmpx'):
                    self.defs |= {('s', 'exec')}
        elif op.startswith(('buffer_', 'global_')):
            self.kind = 'vmem'
            lds = re.search(r'\blds\b', mods) is not None or '_lds_' in op
            self.lds = lds
            if 'load' in op and not lds:
                self.defs = regs_of(clean[0])
                for o in clean[1:]:
                    self.uses |= regs_of(o)
            else:
                for o in clean:
                    self.uses |= regs_of(o)
                if lds:
                    self.uses |= {('s', 'm0')}
                if 'store' in op and ('x4' in op or 'x3' in op):
                    self.store_data = regs_of(clean[0] if op.startswith('buffer_') else clean[1])
        elif op.startswith('ds_'):
            self.kind = 'ds'
            if 'read' in op or 'permute' in op or 'swizzle' in op:
                self.defs = regs_of(clean[0])
                for o in clean[1:]:
                    self.uses |= regs_of(o)
            else:
                for o in clean:
                    self.uses |= regs_of(o)
        elif op.startswith('s_'):
            self.kind = 'salu'
            if op.startswith(('s_load', 's_memrealtime', 's_memtime')):
                self.kind = 'smem'
            if op.startswith(('s_cmp', 's_cbranch', 's_branch', 's_waitcnt', 's_barrier', 's_endpgm', 's_sleep',
                              's_setprio', 's_bitcmp')):
                for o in clean:
                    self.uses |= regs_of(o)
            else:
                self.defs = regs_of(clean[0])
                for o in clean[1:]:
                    self.uses |= regs_of(o)
                if 'saveexec' in op:
                    self.defs |= {('s', 'exec')}


def need(prev, cur):
    n = 0
    pv = {r for r in prev.defs if r[0] in 'va'}
    ps = {r for r in prev.defs if r[0] == 's'}
    if prev.kind == 'valu':
        if cur.kind == 'mfma' and pv & cur.uses:
            n = max(n, 2)
        if cur.kind == 'mfma' and ('s', 'exec') in ps:
            n = max(n, 4)
        if cur.kind == 'valu':
            if cur.dpp and pv & cur.uses:
                n = max(n, 2)
            if cur.dpp and ('s', 'exec') in ps:
                n = max(n, 5)
            if cur.op.startswith('v_permlane') and pv & cur.uses:
                n = max(n, 2)
            if cur.op.startswith(('v_readlane', 'v_readfirstlane')) and pv & cur.uses:
                n = max(n, 1)
            if cur.op.startswith(('v_readlane', 'v_writelane')) and ps & cur.uses:
                n = max(n, 4)
            if prev.op.startswith(TRANS) and not cur.op.startswith(TRANS) and pv & cur.uses:
                n = max(n, 1)
            if prev.op.startswith(TRANS) and pv & cur.uses:
                n = max(n, 1)
            cu = set(cur.uses)
            if cur.op.startswith('v_cndmask') and len(split_ops(cur.text.split(None, 1)[1])) == 3:
                cu |= {('s', 'vcc')}
            if ps & cu:
                n = max(n, 2)
            if prev.op.startswith('v_dot') and pv & (cur.uses | cur.defs):
                if not (cur.op == prev.op and cur.defs == prev.defs and not (pv & (cur.uses - cur.defs))):
                    n = max(n, 3)
        if prev.op.startswith('v_dot') and cur.kind in ('mfma', 'vmem', 'ds') and pv & cur.uses:
            n = max(n, 3)
        if cur.kind == 'vmem' and ps & cur.uses:
            n = max(n, 5)
        if cur.kind in ('salu', 'smem') and ps & cur.uses:
            n = max(n, 1)
        if cur.op.startswith('s_cbranch_vcc') and ('s', 'vcc') in ps:
            n = max(n, 1)
    if prev.kind == 'salu':
        if ('s', 'm0') in ps and cur.kind == 'vmem' and getattr(cur, 'lds', False):
            n = max(n, 1)
    if prev.kind == 'mfma':
        p = prev.passes
        if cur.kind == 'mfma':
            if pv & cur.srcab:
                n = max(n, {4: 8, 8: 12}[p])
            if pv & cur.srcc and not (cur.srcc == prev.defs and cur.passes == p):
                n = max(n, {4: 6, 8: 10}[p])
            if pv & cur.defs and not (cur.srcc == prev.defs and cur.passes == p) and not (pv & cur.srcc):
                n = max(n, {4: 8, 8: 12}[p])
        elif cur.kind in ('valu', 'vmem', 'ds'):
            if pv & (cur.uses | cur.defs):
                n = max(n, {4: 8, 8: 12}[p])
            if cur.kind == 'valu' and prev.srcc & cur.defs:
                n = max(n, {4: 3, 8: 7}[p])
    if prev.kind == 'vmem' and prev.store_data:
        if prev.store_data & cur.defs:
            n = max(n, 2 if cur.kind in ('valu', 'mfma') else 1)
    return n


class Asm:
    def __init__(self):
        self.ins = []
        self.vm = 0
        self.lg = 0

    def __call__(self, text):
        for line in text.split('\n'):
            line = line.strip()
            if not line:
                continue
            i = Ins(line)
            self.ins.append(i)
            if i.kind == 'vmem':
                self.vm += 1
            if i.kind == 'ds':
                self.lg += 1
        return self

    def vtok(self):
        return self.vm

    def ltok(self):
        return self.lg

    def wait_vm(self, tok):
        n = self.vm - tok
        assert 0 <= n <= 63, n
        self(f's_waitcnt vmcnt({n})')

    def wait_lg(self, tok):
        n = self.lg - tok
        assert n >= 0
        if n > 15:
            n = 15
        self(f's_waitcnt lgkmcnt({n})')

    def finalize(self):
        out = []
        for cur in self.ins:
            if cur.states == 0:
                out.append(cur)
                continue
            req = 0
            dist = 0
            for prev in reversed(out):
                if prev.states == 0:
                    continue
                if prev.op in ('s_branch', 's_endpgm'):
                    break
                n = need(prev, cur)
                if n - dist > req:
                    req = n - dist
                dist += prev.states
                if dist >= 20:
                    break
            while req > 0:
                k = min(req, 16)
                out.append(Ins(f's_nop {k - 1}'))
                req -= k
            out.append(cur)
        return out

    def text(self):
        lines = []
        for i in self.finalize():
            if i.label or i.directive:
                lines.append(i.text)
            else:
                lines.append('    ' + i.text)
        return '\n'.join(lines) + '\n'


def vr(b, n=1):
    return f'v{b}' if n == 1 else f'v[{b}:{b + n - 1}]'


def ar(b, n=1):
    return f'a{b}' if n == 1 else f'a[{b}:{b + n - 1}]'


def sr(b, n=1):
    return f's{b}' if n == 1 else f's[{b}:{b + n - 1}]'
```

```python
import sys
from asmdsl import Asm, vr, ar, sr

NAME = 'parallel_sum__compressed_kv_cla__glu_gated_geglu__decode'
DIAG = '--diag' in sys.argv

WS_QA = 0x1000
WS_PB = 0x40000
WS_CT = 0x1C0000
WS_OP = 0x340000
WS_ST = 0x480000
WS_SIZE = 0x4A0000

X_RING = 26112
X_STG = 4 * X_RING
X_SCR = X_STG + 49152
X_MAX = X_SCR
X_WGT = X_SCR + 512
X_CTXP = X_SCR + 1024
X_FP = X_STG
Y_WUK = 131072
Y_ASM = Y_WUK + 2048
LDS_BYTES = 163840

pX, pCKV, pWQ, pWUK, pWUV, pWO, pWG, pWU, pWD, pOUT, pWS = 4, 6, 8, 10, 12, 14, 18, 20, 22, 24, 28
sW, sXCD, sI, sTAG = 30, 31, 32, 33
sT0, sT1 = 34, 35
rA, rB, rC, rWS, rD = 36, 40, 44, 48, 52
sOFF, sT2 = 56, 57
sPB = 58
sPD = 60
sSPIN, sSELLO, sSELHI = 76, 77, 78
sP0 = 79
sSTAMP = 80
sK0, sK1 = 16, 17
sK2, sK3 = 26, 27
sP1 = 3
SPIN_MAX = 1 << 16

a = Asm()
stamp_n = {'X': 0, 'Y': 0}


def stamp(k):
    if DIAG:
        a(f's_memrealtime {sr(sSTAMP + 2 * k, 2)}')


def srd(r, ptr, nbytes):
    a(f'''s_mov_b32 {sr(r)}, {sr(ptr)}
          s_and_b32 {sr(r + 1)}, {sr(ptr + 1)}, 0xffff
          s_mov_b32 {sr(r + 2)}, {nbytes:#x}
          s_mov_b32 {sr(r + 3)}, 0x20000''')


def poll(label, offs):
    a(f'{label}:')
    for k, o in enumerate(offs):
        a(f's_load_dword {sr(sPD + k)}, {sr(sPB, 2)}, {o:#x} glc')
    a(f'''s_add_u32 {sr(sSPIN)}, {sr(sSPIN)}, 1
          s_cmp_gt_u32 {sr(sSPIN)}, {SPIN_MAX}
          s_cbranch_scc1 L_exit
          s_waitcnt lgkmcnt(0)''')
    for k in range(len(offs)):
        a(f'''s_cmp_lg_u32 {sr(sPD + k)}, {sr(sTAG)}
              s_cbranch_scc1 {label}''')


def spin_check():
    a(f'''s_add_u32 {sr(sSPIN)}, {sr(sSPIN)}, 1
          s_cmp_gt_u32 {sr(sSPIN)}, {SPIN_MAX}
          s_cbranch_scc1 L_exit''')


def tgemv_block(raw, A, acc, tmp, first):
    for i in range(8):
        t = tmp + 4 * (i & 1)
        sel = sSELHI if i & 1 else sSELLO
        for k in range(4):
            a(f'v_perm_b32 {vr(t + k)}, {vr(raw + 4 * (2 * k + 1) + (i >> 1))}, {vr(raw + 4 * (2 * k) + (i >> 1))}, {sr(sel)}')
        c = '0' if first else vr(acc + 4 * i, 4)
        a(f'v_mfma_f32_16x16x32_bf16 {vr(acc + 4 * i, 4)}, {vr(A, 4)}, {vr(t, 4)}, {c}')


def transpose_block(raw, dst):
    for i in range(8):
        sel = sSELHI if i & 1 else sSELLO
        for k in range(4):
            a(f'v_perm_b32 {vr(dst + 4 * i + k)}, {vr(raw + 4 * (2 * k + 1) + (i >> 1))}, {vr(raw + 4 * (2 * k) + (i >> 1))}, {sr(sel)}')


def x_loads(XQ, vtmp, rot):
    a(f'''v_and_b32 {vr(vtmp)}, 3, v1
          v_xor_b32 {vr(vtmp)}, {sr(sW)}, {vr(vtmp)}
          v_lshlrev_b32 {vr(vtmp)}, 4, {vr(vtmp)}
          v_bfe_u32 {vr(vtmp + 1)}, v1, 2, 2
          v_lshl_add_u32 {vr(vtmp)}, {vr(vtmp + 1)}, 10, {vr(vtmp)}
          v_lshrrev_b32 {vr(vtmp + 1)}, 4, v1
          v_lshl_add_u32 {vr(vtmp)}, {vr(vtmp + 1)}, 6, {vr(vtmp)}''')
    for s in range(4):
        if rot is None:
            a(f'global_load_dwordx4 {vr(XQ + 4 * s, 4)}, {vr(vtmp)}, {sr(pX, 2)} offset:{256 * s}')
        else:
            a(f'''s_add_u32 {sr(sT0)}, {sr(rot)}, {s}
                  s_and_b32 {sr(sT0)}, {sr(sT0)}, 3
                  s_lshl_b32 {sr(sT0)}, {sr(sT0)}, 8
                  v_add_u32 {vr(vtmp + 1)}, {sr(sT0)}, {vr(vtmp)}
                  global_load_dwordx4 {vr(XQ + 4 * s, 4)}, {vr(vtmp + 1)}, {sr(pX, 2)}''')


def ln_stats(XQ, vMB, vRS, t):
    s0, s1, u0, u1 = t, t + 1, t + 2, t + 3
    a(f'''v_mov_b32 {vr(u0)}, 0x3f803f80
          v_mov_b32 {vr(s0)}, 0
          v_mov_b32 {vr(s1)}, 0''')
    for k in range(16):
        a(f'v_dot2c_f32_bf16 {vr(s0)}, {vr(XQ + k)}, {vr(u0)}')
    for k in range(16):
        a(f'v_dot2c_f32_bf16 {vr(s1)}, {vr(XQ + k)}, {vr(XQ + k)}')
    a(f'''v_and_b32 {vr(u1)}, 3, v1
          v_cmp_eq_u32 vcc, 1, {vr(u1)}''')
    for k in range(16):
        a(f'v_cndmask_b32 {vr(XQ + k)}, {vr(XQ + k)}, {vr(u0)}, vcc')
    for qp in ('[1,0,3,2]', '[2,3,0,1]'):
        for s in (s0, s1):
            a(f'v_add_f32_dpp {vr(s)}, {vr(s)}, {vr(s)} quad_perm:{qp} row_mask:0xf bank_mask:0xf')
    for op in ('v_permlane16_swap_b32', 'v_permlane32_swap_b32'):
        a(f'''v_mov_b32 {vr(u0)}, {vr(s0)}
              v_mov_b32 {vr(u1)}, {vr(s1)}
              {op} {vr(u0)}, {vr(s0)}
              {op} {vr(u1)}, {vr(s1)}
              v_add_f32 {vr(s0)}, {vr(s0)}, {vr(u0)}
              v_add_f32 {vr(s1)}, {vr(s1)}, {vr(u1)}''')
    a(f'''v_mul_f32 {vr(s0)}, 0x3b000000, {vr(s0)}
          v_mul_f32 {vr(s1)}, 0x3b000000, {vr(s1)}
          v_fma_f32 {vr(s1)}, -{vr(s0)}, {vr(s0)}, {vr(s1)}   ; var
          v_max_f32 {vr(s1)}, 0, {vr(s1)}
          v_cvt_pk_bf16_f32 {vr(s1)}, {vr(s1)}, {vr(s0)}
          v_and_b32 {vr(s0)}, 0xffff0000, {vr(s1)}        ; bf16(mean)
          v_lshlrev_b32 {vr(s1)}, 16, {vr(s1)}            ; bf16(var)
          v_add_f32 {vr(s1)}, 0x3727c5ac, {vr(s1)}        ; + 1e-5
          v_cvt_pk_bf16_f32 {vr(s1)}, {vr(s1)}, {vr(s1)}
          v_lshlrev_b32 {vr(s1)}, 16, {vr(s1)}
          v_sqrt_f32 {vr(s1)}, {vr(s1)}
          v_cvt_pk_bf16_f32 {vr(s1)}, {vr(s1)}, {vr(s1)}
          v_lshlrev_b32 {vr(s1)}, 16, {vr(s1)}
          v_rcp_f32 {vr(s1)}, {vr(s1)}
          v_xor_b32 {vr(s0)}, 0x80000000, {vr(s0)}
          v_and_b32 {vr(u0)}, 0x30, v1
          ds_bpermute_b32 {vr(vMB)}, {vr(u0)}, {vr(s0)}
          ds_bpermute_b32 {vr(vRS)}, {vr(u0)}, {vr(s1)}''')


def ln_apply(acc, vMB, vRS, dst):
    for i in range(8):
        a(f'v_fma_f32 {vr(dst + i)}, {vr(vMB)}, {vr(acc + 4 * i + 1)}, {vr(acc + 4 * i)}')
    for i in range(8):
        a(f'v_mul_f32 {vr(dst + i)}, {vr(vRS)}, {vr(dst + i)}')


def chk(bad, q):
    a(f'v_bitop3_b32 {vr(bad)}, {vr(bad)}, {vr(q + 3)}, {sr(sTAG)} bitop3:0xf6')


def make_tag():
    a(f'''s_mul_i32 {sr(sTAG)}, {sr(sTAG)}, 0x9e3779b1
          s_add_u32 {sr(sTAG)}, {sr(sTAG)}, 0x7f4a7c15''')


def ws_base(off_sgpr, const):
    a(f'''s_add_u32 {sr(sT0)}, {sr(off_sgpr)}, {const:#x}
          s_add_u32 {sr(sPB)}, {sr(pWS)}, {sr(sT0)}
          s_addc_u32 {sr(sPB + 1)}, {sr(pWS + 1)}, 0''')


def pos_expr(dst, g, t, f, tmp):
    a(f'''v_lshlrev_b32 {vr(tmp)}, 2, {vr(g)}
          v_add_u32 {vr(tmp)}, {vr(tmp)}, {vr(t)}
          v_add_u32 {vr(tmp)}, 8, {vr(tmp)}               ; t>=8: 16 + (t-8) + 4g
          v_lshl_add_u32 {vr(dst)}, {vr(g)}, 3, {vr(t)}   ; t<8 : 8g + t
          v_cmp_lt_u32 vcc, 7, {vr(t)}
          v_cndmask_b32 {vr(dst)}, {vr(dst)}, {vr(tmp)}, vcc
          v_xor_b32 {vr(dst)}, {sr(f)}, {vr(dst)}
          v_lshlrev_b32 {vr(dst)}, 4, {vr(dst)}''')


a(f'{NAME}_kernel:')
stamp(0)
a(f'''s_load_dwordx16 s[4:19], s[0:1], 0
      s_load_dwordx8 s[20:27], s[0:1], 64
      s_load_dwordx2 s[28:29], s[0:1], 96
      s_cmp_ge_u32 s2, 256
      s_cbranch_scc1 L_end
      v_lshrrev_b32 v2, 6, v0
      v_and_b32 v1, 63, v0
      v_readfirstlane_b32 {sr(sW)}, v2
      s_and_b32 {sr(sXCD)}, s2, 7
      s_lshr_b32 {sr(sI)}, s2, 4
      s_getpc_b64 {sr(sPB, 2)}
L_pc:
      s_lshr_b32 {sr(sT0)}, s2, 3
      s_lshl_b32 {sr(sT0)}, {sr(sT0)}, 10
      v_lshrrev_b32 v3, 5, v0
      v_lshl_add_u32 v3, v3, 7, {sr(sT0)}
      v_min_u32 v3, L_end-L_pc, v3
      global_load_dword v2, v3, {sr(sPB, 2)}
      s_mov_b32 {sr(sSPIN)}, 0
      s_mov_b32 {sr(sSELLO)}, 0x05040100
      s_mov_b32 {sr(sSELHI)}, 0x07060302
      s_bitcmp1_b32 s2, 3
      s_cbranch_scc1 L_X''')
vm_entry = a.vm

XQ, ACC, WQ, WUK, TMP = 16, 32, 64, 192, 224
vMB, vRS = 12, 13
sH, sCQ = sP0, sP1
a(f'''s_lshr_b32 {sr(sH)}, {sr(sI)}, 2
      s_lshl_b32 {sr(sT0)}, {sr(sXCD)}, 2
      s_add_u32 {sr(sH)}, {sr(sH)}, {sr(sT0)}          ; h = 4*xcd + i/4
      s_and_b32 {sr(sCQ)}, {sr(sI)}, 3
      v_lshrrev_b32 v4, 4, v1
      v_and_b32 v5, 15, v1
      s_lshl_b32 {sr(sT0)}, {sr(sW)}, 16
      s_lshl_b32 {sr(sT1)}, {sr(sH)}, 8
      s_add_u32 {sr(sT0)}, {sr(sT0)}, {sr(sT1)}
      v_lshl_add_u32 v6, v4, 18, {sr(sT0)}
      v_lshl_add_u32 v6, v5, 4, v6
      s_lshl_b32 {sr(sT0)}, {sr(sCQ)}, 20
      s_add_u32 {sr(sT1)}, {sr(sT1)}, {sr(sT0)}
      s_lshl_b32 {sr(sT0)}, {sr(sW)}, 18
      s_add_u32 {sr(sT1)}, {sr(sT1)}, {sr(sT0)}
      v_lshl_add_u32 v7, v4, 13, {sr(sT1)}
      v_xor_b32 v8, v4, v5
      v_lshl_add_u32 v8, v8, 4, v7
      v_xor_b32 v9, 64, v8
      v_xor_b32 v10, 0x80, v8
      v_xor_b32 v11, 0xc0, v8
      s_waitcnt lgkmcnt(0)''')
a(f's_load_dword {sr(sTAG)}, {sr(pWS, 2)}, 0 glc')
x_loads(XQ, 14, sCQ)
tok_x = a.vtok()
srd(rA, pWQ, 4 << 20)
srd(rB, pWUK, 4 << 20)


def wq_block(s):
    a(f'''s_add_u32 {sr(sOFF)}, {sr(sCQ)}, {s}
          s_and_b32 {sr(sOFF)}, {sr(sOFF)}, 3
          s_lshl_b32 {sr(sOFF)}, {sr(sOFF)}, 20''')
    for j in range(8):
        a(f'buffer_load_dwordx4 {vr(WQ + 32 * s + 4 * j, 4)}, v6, {sr(rA, 4)}, {sr(sOFF)} offen nt')
        if j < 7:
            a(f's_addk_i32 {sr(sOFF)}, 0x2000')
    return a.vtok()


tok_wq = [wq_block(0)]
a(f'''s_lshl_b32 {sr(sT0)}, {sr(sW)}, 13
      s_add_u32 m0, {sr(sT0)}, {Y_WUK}
      s_mov_b32 {sr(sOFF)}, 0''')
for u in range(8):
    a(f'buffer_load_dwordx4 {vr(8 + (u >> 1))}, {sr(rB, 4)}, {sr(sOFF)} offen nt lds')
    if u < 7:
        a(f'''s_addk_i32 m0, 0x400
              s_add_u32 {sr(sOFF)}, {sr(sOFF)}, 0x8000''')
tok_wuk = a.vtok()
for s in range(1, 4):
    tok_wq.append(wq_block(s))
stamp(1)
srd(rWS, pWS, WS_SIZE)
srd(rC, pCKV, 16 << 20)
a.wait_vm(tok_x)
ln_stats(XQ, vMB, vRS, 8)
a(f'''s_lshl_b32 {sr(sT0)}, {sr(sW)}, 13
      s_add_u32 {sr(sT0)}, {sr(sT0)}, {Y_WUK}
      v_lshrrev_b32 v8, 2, v5
      v_lshl_add_u32 v8, v8, 11, {sr(sT0)}
      v_and_b32 v9, 3, v5
      v_lshl_add_u32 v8, v9, 8, v8
      v_xor_b32 v9, v4, v5
      v_lshl_add_u32 v240, v9, 4, v8
      v_xor_b32 v241, 64, v240
      v_xor_b32 v242, 0x80, v240
      v_xor_b32 v243, 0xc0, v240
      v_and_b32 v8, 3, v5
      v_lshlrev_b32 v8, 13, v8
      v_lshrrev_b32 v10, 2, v5
      v_lshl_add_u32 v8, v10, 8, v8
      v_lshl_add_u32 v8, v9, 4, v8
      v_add_u32 v244, {Y_WUK}, v8
      v_xor_b32 v245, 64, v244
      v_xor_b32 v246, 0x80, v244
      v_xor_b32 v247, 0xc0, v244
      v_lshl_add_u32 v8, v4, 2, {sr(sW)}
      v_xor_b32 v8, v8, v5
      v_lshlrev_b32 v8, 4, v8
      v_lshl_add_u32 v8, v4, 8, v8
      v_add_u32 v248, {sr(sT0)}, v8''')
a.wait_vm(tok_wq[0])
tgemv_block(WQ, XQ, ACC, TMP, True)
a.wait_vm(tok_wuk)
for T in range(2):
    for s in range(4):
        a(f'ds_read_b128 {vr(WUK + 16 * T + 4 * s, 4)}, {vr(240 + s)} offset:{1024 * T}')
a(f'''s_waitcnt lgkmcnt(0)''')
make_tag()
a(f'''s_lshr_b32 {sr(sT1)}, {sr(sH)}, 1
      s_and_b32 {sr(sT1)}, {sr(sT1)}, 7
      s_mul_i32 {sr(sT0)}, {sr(sW)}, 3
      v_lshrrev_b32 v8, 1, v4
      v_and_b32 v9, 1, v4
      v_add_u32 v10, {sr(sT0)}, v9''')
pos_expr(249, 8, 10, sT1, 11)
a(f'''s_add_u32 {sr(sT0)}, {sr(sT0)}, 2
      v_mov_b32 v10, {sr(sT0)}''')
pos_expr(250, 8, 10, sT1, 11)
a(f'''v_lshl_add_u32 v250, v9, 2, v250
      v_lshrrev_b32 v8, 2, v5
      v_mul_u32_u24 v8, 384, v8
      v_add_u32 v8, {Y_ASM}, v8
      v_add_u32 v249, v8, v249
      v_add_u32 v250, v8, v250
      s_mul_i32 {sr(sT0)}, {sr(sW)}, 384
      s_add_u32 {sr(sT0)}, {sr(sT0)}, {Y_ASM}
      v_lshl_add_u32 v251, v1, 4, {sr(sT0)}
      s_mul_i32 {sr(sT0)}, {sr(sW)}, 49152
      s_mul_i32 {sr(sT1)}, {sr(sCQ)}, 12288
      s_add_u32 {sr(sT0)}, {sr(sT0)}, {sr(sT1)}
      s_mul_i32 {sr(sT1)}, {sr(sH)}, 384
      s_add_u32 {sr(sT0)}, {sr(sT0)}, {sr(sT1)}
      s_add_u32 {sr(sT0)}, {sr(sT0)}, {WS_QA}
      v_lshl_add_u32 v252, v1, 4, {sr(sT0)}
      s_lshl_b32 {sr(sT0)}, {sr(sH)}, 19
      s_lshl_b32 {sr(sT1)}, {sr(sW)}, 17
      s_add_u32 {sr(sT0)}, {sr(sT0)}, {sr(sT1)}
      s_lshl_b32 {sr(sT1)}, {sr(sCQ)}, 8
      s_add_u32 {sr(sT0)}, {sr(sT0)}, {sr(sT1)}
      v_lshlrev_b32 v8, 2, v4
      v_xor_b32 v8, v8, v5
      v_lshl_add_u32 v8, v8, 4, {sr(sT0)}
      v_lshl_add_u32 v253, v4, 10, v8''')

v_issued = 0


def v_loads(n):
    global v_issued
    for _ in range(n):
        u = v_issued
        if u == 0:
            a(f'''s_lshl_b32 m0, {sr(sW)}, 15
                  s_mov_b32 {sr(sOFF)}, 0''')
        else:
            a(f'''s_addk_i32 m0, 0x400
                  s_addk_i32 {sr(sOFF)}, 0x1000''')
        a(f'buffer_load_dwordx4 v253, {sr(rC, 4)}, {sr(sOFF)} offen nt lds')
        v_issued += 1


for s in range(1, 4):
    a.wait_vm(tok_wq[s])
    if s == 3:
        stamp(2)
        v_loads(4)
    tgemv_block(WQ + 32 * s, XQ + 4 * s, ACC, TMP, False)
ln_apply(ACC, vMB, vRS, TMP)
for k in range(4):
    a(f'v_cvt_pk_bf16_f32 {vr(TMP + 8 + k)}, {vr(TMP + 2 * k)}, {vr(TMP + 2 * k + 1)}')
a(f'''ds_write_b128 v248, {vr(TMP + 8, 4)}
      s_waitcnt lgkmcnt(0)
      s_barrier''')
for s in range(4):
    a(f'ds_read_b128 {vr(XQ + 4 * s, 4)}, {vr(244 + s)}')
for s in range(4):
    a(f's_waitcnt lgkmcnt({3 - s})')
    for T in range(2):
        c = '0' if s == 0 else vr(ACC + 4 * T, 4)
        a(f'v_mfma_f32_16x16x32_bf16 {vr(ACC + 4 * T, 4)}, {vr(WUK + 16 * T + 4 * s, 4)}, {vr(XQ + 4 * s, 4)}, {c}')
for qp in ('[1,0,3,2]', '[2,3,0,1]'):
    for k in range(8):
        a(f'v_add_f32_dpp {vr(ACC + k)}, {vr(ACC + k)}, {vr(ACC + k)} quad_perm:{qp} row_mask:0xf bank_mask:0xf')
import struct
SC = struct.unpack('<I', struct.pack('<f', 128 ** -0.5 * 1.4426950408889634))[0]
for k in range(8):
    a(f'v_mul_f32 {vr(ACC + k)}, {SC:#x}, {vr(ACC + k)}')
for k in range(4):
    a(f'v_cvt_pk_bf16_f32 {vr(TMP + k)}, {vr(ACC + 2 * k)}, {vr(ACC + 2 * k + 1)}')
a(f'''ds_write_b128 v249, {vr(TMP, 4)}
      ds_write_b32 v250, {vr(TMP + 3)}
      s_waitcnt lgkmcnt(0)
      s_barrier
      ds_read_b128 {vr(TMP + 4, 4)}, v251
      v_cmp_gt_u32 vcc, 24, v1
      s_waitcnt lgkmcnt(0)
      v_mov_b32 {vr(TMP + 7)}, {sr(sTAG)}
      s_mov_b64 exec, vcc
      buffer_store_dwordx4 {vr(TMP + 4, 4)}, v252, {sr(rWS, 4)}, 0 offen sc1
      s_mov_b64 exec, -1''')
stamp(3)

v_loads(32 - v_issued)
PACC, PRING = 32, 96
vBAD = 31
a(f'''v_lshrrev_b32 v8, 5, v1
      v_bfe_u32 v9, v1, 2, 2
      v_lshlrev_b32 v10, 10, v8
      v_lshl_add_u32 v10, v9, 8, v10
      v_xor_b32 v9, {sr(sW)}, v9
      v_lshl_add_u32 v10, v9, 6, v10
      v_bfe_u32 v9, v1, 4, 1
      v_lshl_add_u32 v10, v9, 5, v10
      v_and_b32 v9, 3, v1
      v_lshl_add_u32 v240, v9, 3, v10
      v_add_u32 v241, 0x10000, v240
      s_lshl_b32 {sr(sT0)}, {sr(sH)}, 2
      s_mul_i32 {sr(sT0)}, {sr(sT0)}, 12288
      s_mul_i32 {sr(sT1)}, {sr(sW)}, 3072
      s_add_u32 {sr(sT2)}, {sr(sT0)}, {sr(sT1)}
      s_add_u32 {sr(sT0)}, {sr(sT2)}, {WS_PB}
      v_lshl_add_u32 v242, v1, 4, {sr(sT0)}
      v_lshlrev_b32 v243, 4, v1''')
ws_base(sT2, WS_PB + 2048 + 1008 + 12)
a(f'''s_lshr_b32 {sr(sT1)}, {sr(sH)}, 1
      s_and_b32 {sr(sT1)}, {sr(sT1)}, 7
      s_mul_i32 {sr(sT0)}, {sr(sW)}, 3
      v_and_b32 v9, 31, v1
      v_mul_u32_u24 v9, 400, v9
      v_add_u32 v9, {Y_WUK}, v9''')
for i in range(3):
    a(f'''s_add_u32 {sr(sT2)}, {sr(sT0)}, {i}
          v_mov_b32 v10, {sr(sT2)}''')
    pos_expr(244 + i, 8, 10, sT1, 11)
    a(f'v_add_u32 {vr(244 + i)}, v9, {vr(244 + i)}')
a(f'''s_mul_i32 {sr(sT1)}, {sr(sCQ)}, 12288
      s_mul_i32 {sr(sT2)}, {sr(sH)}, 384
      s_add_u32 {sr(sT1)}, {sr(sT1)}, {sr(sT2)}
      s_add_u32 {sr(sT1)}, {sr(sT1)}, {WS_CT}
      s_lshl_b32 {sr(sT0)}, {sr(sT0)}, 6''')
for i in range(3):
    a(f'''v_add_u32 v9, {sr(sT0)}, v1
          v_add_u32 v9, {64 * i}, v9
          v_mul_u32_u24 v10, 2731, v9
          v_lshrrev_b32 v10, 16, v10                      ; row
          v_mul_u32_u24 v11, 24, v10
          v_sub_u32 v9, v9, v11                           ; pos
          v_lshlrev_b32 v9, 4, v9
          v_mul_u32_u24 v11, 400, v10
          v_add_u32 v11, v11, v9
          v_add_u32 {vr(247 + i)}, {Y_WUK}, v11
          v_mul_u32_u24 v11, 49152, v10
          v_add3_u32 {vr(250 + i)}, v11, v9, {sr(sT1)}''')
a(f'''s_waitcnt vmcnt(0)
      s_barrier''')
stamp(4)
for tau in range(16):
    for u in range(2):
        for hf in range(2):
            idx = 8 * tau + 4 * u + 2 * hf
            base = 240 if idx < 64 else 241
            a(f'ds_read_b64_tr_b16 {ar(8 * tau + 4 * u + 2 * hf, 2)}, {vr(base)} offset:{(idx & 63) * 1024}')
a(f'''s_waitcnt lgkmcnt(0)
      s_barrier''')
stamp(5)
poll('L_pollP', [12288 * p for p in range(4)])
a('L_loadP:')
a(f's_mul_i32 {sr(sT0)}, {sr(sW)}, 3072')
tokP = []
for p in range(4):
    a(f'''s_add_u32 m0, {sr(sT0)}, {12288 * p}
          s_mov_b32 {sr(sOFF)}, {12288 * p}''')
    for i in range(3):
        a(f'buffer_load_dwordx4 v242, {sr(rWS, 4)}, {sr(sOFF)} offen offset:{1024 * i} sc1 lds')
    tokP.append(a.vtok())
stamp(6)
a(f'v_mov_b32 {vr(vBAD)}, 0')
vM, vL, vF = 144, 148, 152
DEPTH = 2
ltok = {}


def p_reads(tau):
    if tau % 4 == 0:
        a.wait_vm(tokP[tau // 4])
        a('s_barrier')
    q = PRING + 12 * (tau % 4)
    for i in range(3):
        a(f'ds_read_b128 {vr(q + 4 * i, 4)}, v243 offset:{3072 * tau + 1024 * i}')
    ltok[tau] = a.ltok()


for tau in range(DEPTH):
    p_reads(tau)
for tau in range(16):
    if tau + DEPTH < 16:
        p_reads(tau + DEPTH)
    q = PRING + 12 * (tau % 4)
    p = tau // 4
    a.wait_lg(ltok[tau])
    chk(vBAD, q)
    chk(vBAD, q + 4)
    a(f'''v_mov_b32 {vr(q + 3)}, {vr(q + 8)}
          v_mov_b32 {vr(q + 7)}, {vr(q + 9)}''')
    chk(vBAD, q + 8)
    if tau % 4 == 0:
        a(f'''v_mov_b32 {vr(vM + p)}, {vr(q + 10)}
              v_mov_b32 {vr(vL + p)}, {vr(q + 10)}''')
    else:
        a(f'v_add_f32 {vr(vL + p)}, {vr(vL + p)}, {vr(q + 10)}')
    for u in range(2):
        c = '0' if (tau % 4 == 0 and u == 0) else vr(PACC + 16 * p, 16)
        a(f'v_mfma_f32_32x32x16_bf16 {vr(PACC + 16 * p, 16)}, {ar(8 * tau + 4 * u, 4)}, {vr(q + 4 * u, 4)}, {c}')
    if tau == 12:
        for p2 in range(4):
            a(f'v_mov_b32 {vr(vF + p2)}, {vr(vM + p2)}')
        for p2 in range(4):
            a(f'v_permlane32_swap_b32 {vr(vM + p2)}, {vr(vF + p2)}')
        a(f'''v_max3_f32 v8, {vr(vM)}, {vr(vM + 1)}, {vr(vM + 2)}
              v_max_f32 v8, v8, {vr(vM + 3)}''')
        for p2 in range(4):
            a(f'v_sub_f32 {vr(vF + p2)}, {vr(vM + p2)}, v8')
        for p2 in range(4):
            a(f'v_exp_f32 {vr(vF + p2)}, {vr(vF + p2)}')
    if tau == 13:
        for k in range(16):
            a(f'v_mul_f32 {vr(PACC + k)}, {vr(vF)}, {vr(PACC + k)}')
    if tau in (14, 15):
        p2 = tau - 13
        for k in range(16):
            a(f'v_fmac_f32 {vr(PACC + k)}, {vr(vF + p2)}, {vr(PACC + 16 * p2 + k)}')
a(f'''v_cmp_ne_u32 vcc, 0, {vr(vBAD)}
      v_mul_f32 v9, {vr(vF)}, {vr(vL)}
      v_fmac_f32 v9, {vr(vF + 1)}, {vr(vL + 1)}
      v_fmac_f32 v9, {vr(vF + 2)}, {vr(vL + 2)}
      v_fmac_f32 v9, {vr(vF + 3)}, {vr(vL + 3)}
      s_cbranch_vccnz L_retryP
      v_cmp_lt_u32 vcc, 31, v1''')
G = PRING
a(f'v_cndmask_b32 {vr(G + 10)}, v8, v9, vcc')
for k in range(16):
    a(f'v_fmac_f32 {vr(PACC + k)}, {vr(vF + 3)}, {vr(PACC + 48 + k)}')
for k, d in enumerate((0, 1, 2, 8, 4, 5, 6, 9)):
    a(f'v_cvt_pk_bf16_f32 {vr(G + d)}, {vr(PACC + 2 * k)}, {vr(PACC + 2 * k + 1)}')
for i in range(3):
    a(f'ds_write_b128 {vr(244 + i)}, {vr(G + 4 * i, 4)}')
a('''s_waitcnt lgkmcnt(0)
     s_barrier''')
for i in range(3):
    a(f'ds_read_b128 {vr(G + 12 + 4 * i, 4)}, {vr(247 + i)}')
for i in range(3):
    a(f'''s_waitcnt lgkmcnt({2 - i})
          v_mov_b32 {vr(G + 12 + 4 * i + 3)}, {sr(sTAG)}
          buffer_store_dwordx4 {vr(G + 12 + 4 * i, 4)}, {vr(250 + i)}, {sr(rWS, 4)}, 0 offen sc1''')
stamp(7)

sPHI = sP1
a(f'''s_cmp_lg_u32 {sr(sW)}, 0
      s_cbranch_scc1 L_exit
      s_cmp_ge_u32 {sr(sI)}, 8
      s_cbranch_scc1 L_exit
      s_lshl_b32 {sr(sPHI)}, {sr(sXCD)}, 3
      s_add_u32 {sr(sPHI)}, {sr(sPHI)}, {sr(sI)}
      s_lshr_b32 {sr(sT0)}, {sr(sPHI)}, 4              ; w'
      s_and_b32 {sr(sT1)}, {sr(sPHI)}, 15              ; Q'
      s_mul_i32 {sr(sT2)}, {sr(sT0)}, 3072
      s_lshl_b32 {sr(sOFF)}, {sr(sT1)}, 6
      s_add_u32 {sr(sT2)}, {sr(sT2)}, {sr(sOFF)}       ; w'*3072 + Q'*64
      s_lshl_b32 {sr(sT0)}, {sr(sT0)}, 8
      s_lshr_b32 {sr(sOFF)}, {sr(sT1)}, 2
      s_lshl_b32 {sr(sOFF)}, {sr(sOFF)}, 10
      s_add_u32 {sr(sT0)}, {sr(sT0)}, {sr(sOFF)}
      s_and_b32 {sr(sT1)}, {sr(sT1)}, 3
      s_lshl_b32 {sr(sT1)}, {sr(sT1)}, 6
      s_add_u32 {sr(sT0)}, {sr(sT0)}, {sr(sT1)}
      v_and_b32 v4, 3, v1
      v_lshl_add_u32 v5, v4, 4, {sr(sT0)}
      v_lshrrev_b32 v6, 4, v1
      v_lshl_add_u32 v5, v6, 2, v5
      global_load_dword v7, v5, {sr(pX, 2)}
      v_lshrrev_b32 v6, 2, v1
      v_mul_u32_u24 v8, 12288, v6
      v_lshl_add_u32 v8, v4, 4, v8
      s_add_u32 {sr(sT0)}, {sr(sT2)}, {WS_OP}
      v_add_u32 v8, {sr(sT0)}, v8
      v_cmp_gt_u32 vcc, 12, v6
      v_add_u32 v9, {16 * 12288}, v8
      v_cndmask_b32 v9, v8, v9, vcc
      v_cndmask_b32 v10, 0, 1.0, vcc''')
srd(rD, pOUT, 4096)
FQ, FS = 32, 16
ws_base(sT2, WS_OP + 64 * 12288 + 2048 + 12)
poll('L_pollF', [12288 * k for k in (0, 4, 9, 13, 18, 22, 27)])
a('L_loadF:')
a(f's_mov_b32 {sr(sOFF)}, {64 * 12288}')
for grp in range(2):
    for i in range(3):
        a(f'buffer_load_dwordx4 {vr(FQ + 12 * grp + 4 * i, 4)}, {vr(8 + grp)}, {sr(rWS, 4)}, {sr(sOFF)} offen offset:{1024 * i} sc1')
a(f'v_mov_b32 {vr(vBAD)}, 0')
spin_check()
a('s_waitcnt vmcnt(0)')
for k in range(6):
    chk(vBAD, FQ + 4 * k)
a(f'''v_cmp_ne_u32 vcc, 0, {vr(vBAD)}
      s_cbranch_vccnz L_loadF''')
VI = [0, 1, 2, 4, 5, 6, 8, 9]
for k in range(8):
    a(f'v_fma_f32 {vr(FS + k)}, v10, {vr(FQ + 12 + VI[k])}, {vr(FQ + VI[k])}')
ws_base(sT2, WS_OP + 2048 + 12)
stamp(8)
poll('L_pollO', [12288 * k for k in (0, 9, 18, 27, 36, 45, 54, 63, 4, 13, 22, 31, 32, 41, 50, 59)[:14]])
a('L_loadO:')
tokO = []
for grp in range(4):
    a(f's_mov_b32 {sr(sOFF)}, {16 * 12288 * grp}')
    for i in range(3):
        a(f'buffer_load_dwordx4 {vr(FQ + 12 * grp + 4 * i, 4)}, v8, {sr(rWS, 4)}, {sr(sOFF)} offen offset:{1024 * i} sc1')
    tokO.append(a.vtok())
a(f'v_mov_b32 {vr(vBAD)}, 0')
spin_check()
FT = 24 + 64
for grp in range(4):
    a.wait_vm(tokO[grp])
    for i in range(3):
        chk(vBAD, FQ + 12 * grp + 4 * i)
    for k in range(8):
        src = FS + k if grp == 0 else FT + k
        a(f'v_add_f32 {vr(FT + k)}, {vr(src)}, {vr(FQ + 12 * grp + VI[k])}')
a(f'''v_cmp_ne_u32 vcc, 0, {vr(vBAD)}
      s_cbranch_vccnz L_loadO''')
for k in range(4):
    a(f'v_permlane32_swap_b32 {vr(FT + k)}, {vr(FT + 4 + k)}')
for k in range(4):
    a(f'v_add_f32 {vr(FT + k)}, {vr(FT + k)}, {vr(FT + 4 + k)}')
for k in range(2):
    a(f'v_permlane16_swap_b32 {vr(FT + k)}, {vr(FT + 2 + k)}')
for k in range(2):
    a(f'v_add_f32 {vr(FT + k)}, {vr(FT + k)}, {vr(FT + 2 + k)}')
for r in (8, 4):
    for k in range(2):
        a(f'v_add_f32_dpp {vr(FT + k)}, {vr(FT + k)}, {vr(FT + k)} row_ror:{r} row_mask:0xf bank_mask:0xf')
a(f'''v_lshlrev_b32 v11, 16, v7
      v_and_b32 v7, 0xffff0000, v7
      v_add_f32 {vr(FT)}, {vr(FT)}, v11
      v_add_f32 {vr(FT + 1)}, {vr(FT + 1)}, v7
      v_cvt_pk_bf16_f32 v7, {vr(FT)}, {vr(FT + 1)}
      s_mov_b32 exec_lo, 0x000f000f
      s_mov_b32 exec_hi, 0x000f000f
      buffer_store_dword v7, v5, {sr(rD, 4)}, 0 offen
      s_mov_b64 exec, 1
      s_cmp_lg_u32 {sr(sPHI)}, 0
      s_cbranch_scc1 L_exit
      v_mov_b32 v4, {sr(sTAG)}
      v_mov_b32 v6, 0
      buffer_store_dword v4, v6, {sr(rWS, 4)}, 0 offen sc1
      s_branch L_exit''')
a('L_retryP:')
spin_check()
a('''s_waitcnt vmcnt(0) lgkmcnt(0)
     s_barrier
     s_branch L_loadP''')

a.vm = vm_entry
STGA, vCA, vCO = 16, 28, 30
SACC, RING, W2R, W2T = 32, 64, 112, 176
sXI, sRING = sP0, sP1
a(f'''L_X:
      s_lshl_b32 {sr(sXI)}, {sr(sXCD)}, 4
      s_add_u32 {sr(sXI)}, {sr(sXI)}, {sr(sI)}
      s_mul_i32 {sr(sRING)}, {sr(sW)}, {X_RING}
      v_lshrrev_b32 v4, 4, v1
      v_and_b32 v5, 15, v1
      s_lshl_b32 {sr(sT0)}, {sr(sXI)}, 17
      s_lshl_b32 {sr(sT1)}, {sr(sW)}, 15
      s_add_u32 {sr(sT0)}, {sr(sT0)}, {sr(sT1)}
      v_xor_b32 v6, v4, v5
      v_lshl_add_u32 v6, v6, 4, {sr(sT0)}
      v_lshl_add_u32 {vr(vCO)}, v4, 10, v6
      s_waitcnt lgkmcnt(0)''')
srd(rC, pCKV, 16 << 20)


def ckv_block(cq):
    a(f'''s_add_u32 m0, {sr(sRING)}, {(cq % 3) * 8704}
          s_mov_b32 {sr(sOFF)}, {256 * cq}''')
    for u in range(8):
        a(f'buffer_load_dwordx4 {vr(vCO)}, {sr(rC, 4)}, {sr(sOFF)} offen nt lds')
        if u < 7:
            a(f'''s_addk_i32 m0, 0x440
                  s_addk_i32 {sr(sOFF)}, 0x1000''')
    return a.vtok()


def ckv_reads(cq):
    for w2 in range(4):
        for u in range(2):
            a(f'ds_read_b128 {ar(4 * (8 * cq + 2 * w2 + u), 4)}, {vr(vCA + u)} offset:{(cq % 3) * 8704 + 64 * w2}')


tokC = [ckv_block(0)]
a(f's_load_dword {sr(sTAG)}, {sr(pWS, 2)}, 0 glc')
srd(rWS, pWS, WS_SIZE)
a(f'''v_bfe_u32 v6, v1, 2, 3
      v_mul_u32_u24 v6, 1088, v6
      v_and_b32 v7, 3, v1
      v_lshl_add_u32 v6, v7, 8, v6
      v_lshrrev_b32 v8, 5, v1
      v_lshlrev_b32 v9, 1, v8
      v_xor_b32 v9, v9, v7
      v_lshl_add_u32 v6, v9, 4, v6
      v_add_u32 {vr(vCA)}, {sr(sRING)}, v6
      v_xor_b32 v9, 1, v9
      v_and_b32 v6, 0xffffffcf, v6
      v_lshl_add_u32 v6, v9, 4, v6
      v_add_u32 {vr(vCA + 1)}, {sr(sRING)}, v6''')
tokC.append(ckv_block(1))
a(f'''v_and_b32 v6, 31, v1
      v_mul_u32_u24 v6, 384, v6
      v_add_u32 v6, {X_STG}, v6
      v_bfe_u32 v7, v1, 1, 3
      v_lshl_add_u32 v9, v8, 7, v6
      v_lshl_add_u32 {vr(STGA)}, v7, 4, v9''')
for t in range(1, 8):
    a(f'v_xor_b32 {vr(STGA + t)}, {16 * t}, {vr(STGA)}')
a(f'''v_lshlrev_b32 v9, 2, v8
      v_xor_b32 v9, v9, v7
      v_lshl_add_u32 v9, v9, 4, v6
      v_add_u32 {vr(STGA + 8)}, 256, v9''')
for t in range(1, 4):
    a(f'v_xor_b32 {vr(STGA + 8 + t)}, {16 * t}, {vr(STGA + 8)}')
tokC.append(ckv_block(2))
stamp(1)
sROW, sROLE = sK0, sK1
a(f'''s_lshl_b32 {sr(sT0)}, {sr(sXCD)}, 3
      s_add_u32 {sr(sT0)}, {sr(sT0)}, {sr(sI)}
      s_sub_u32 {sr(sT1)}, {sr(sI)}, 8
      s_lshl_b32 {sr(sT1)}, {sr(sT1)}, 3
      s_add_u32 {sr(sT1)}, {sr(sT1)}, {sr(sXCD)}        ; fb
      s_cmp_lt_u32 {sr(sT1)}, 28
      s_cselect_b32 {sr(sROLE)}, 1, 2
      s_cselect_b32 {sr(rD + 2)}, {1792 * 1024}, 0
      s_cmp_lt_u32 {sr(sI)}, 8
      s_cselect_b32 {sr(sROW)}, {sr(sT0)}, {sr(sT1)}
      s_cselect_b32 {sr(sROLE)}, 0, {sr(sROLE)}
      s_cselect_b32 {sr(rD)}, {sr(pWO)}, {sr(pWD)}
      s_cselect_b32 {sr(rD + 1)}, {sr(pWO + 1)}, {sr(pWD + 1)}
      s_cselect_b32 {sr(rD + 2)}, {4 << 20}, {sr(rD + 2)}
      s_and_b32 {sr(rD + 1)}, {sr(rD + 1)}, 0xffff
      s_mov_b32 {sr(rD + 3)}, 0x20000
      s_lshl_b32 {sr(sT0)}, {sr(sROW)}, 16
      s_lshl_b32 {sr(sT1)}, {sr(sW)}, 8
      s_add_u32 {sr(sT0)}, {sr(sT0)}, {sr(sT1)}
      v_lshl_add_u32 v14, v4, 13, {sr(sT0)}
      v_lshl_add_u32 v14, v5, 4, v14
      s_lshr_b32 {sr(sT0)}, {sr(sXCD)}, 1
      s_mul_i32 {sr(sT0)}, {sr(sT0)}, 49152
      s_mul_i32 {sr(sT1)}, {sr(sW)}, 3072
      s_add_u32 {sr(sT2)}, {sr(sT0)}, {sr(sT1)}
      s_add_u32 {sr(sT0)}, {sr(sT2)}, {WS_QA}
      v_lshl_add_u32 v15, v1, 4, {sr(sT0)}''')
ws_base(sT2, WS_QA + 12)
a.wait_vm(tokC[0])
ckv_reads(0)
a('s_waitcnt lgkmcnt(0)')
make_tag()
tokC.append(ckv_block(3))
a.wait_vm(tokC[1])
ckv_reads(1)
stamp(2)
poll('L_pollQ', [(k & 3) * 12288 + k * 384 for k in range(8)])


def qa_loads():
    toks = []
    a(f'''s_mul_i32 {sr(sT0)}, {sr(sW)}, 3072
          s_add_u32 {sr(sT0)}, {sr(sT0)}, {X_STG}''')
    for cq in range(4):
        a(f'''s_add_u32 m0, {sr(sT0)}, {12288 * cq}
              s_mov_b32 {sr(sOFF)}, {12288 * cq}''')
        for i in range(3):
            a(f'buffer_load_dwordx4 v15, {sr(rWS, 4)}, {sr(sOFF)} offen offset:{1024 * i} sc1 lds')
        toks.append(a.vtok())
    return toks


def w2_load(k):
    s, j = k >> 3, k & 7
    a(f'''s_mov_b32 {sr(sOFF)}, {(32 * s + 4 * (j >> 2)) * 1024}
          buffer_load_dwordx4 {vr(W2R + 4 * k, 4)}, v14, {sr(rD, 4)}, {sr(sOFF)} offen offset:{1024 * (j & 3)} nt''')


stamp(3)
tokQ = qa_loads()
a.wait_vm(tokC[2])
ckv_reads(2)
a.wait_vm(tokC[3])
ckv_reads(3)
stamp(4)
a('L_S:')
a(f'v_mov_b32 {vr(vBAD)}, 0')
ltok = {}


def q_reads(gi):
    cq, w2 = gi >> 2, gi & 3
    if w2 == 0:
        a.wait_vm(tokQ[cq])
        a('s_barrier')
    q = RING + 12 * (gi % 4)
    for i in range(3):
        a(f'ds_read_b128 {vr(q + 4 * i, 4)}, {vr(STGA + 3 * w2 + i)} offset:{12288 * cq}')
    ltok[gi] = a.ltok()


W2_IN_S = 8
for gi in range(DEPTH):
    q_reads(gi)
for gi in range(16):
    if gi + DEPTH < 16:
        q_reads(gi + DEPTH)
    q = RING + 12 * (gi % 4)
    a.wait_lg(ltok[gi])
    chk(vBAD, q)
    chk(vBAD, q + 4)
    a(f'''v_mov_b32 {vr(q + 3)}, {vr(q + 8)}
          v_mov_b32 {vr(q + 7)}, {vr(q + 9)}''')
    chk(vBAD, q + 8)
    if gi % 2 == 0 and gi // 2 < W2_IN_S:
        w2_load(gi // 2)
    for u in range(2):
        c = '0' if (gi == 0 and u == 0) else vr(SACC, 16)
        a(f'v_mfma_f32_32x32x16_bf16 {vr(SACC, 16)}, {ar(4 * (2 * gi + u), 4)}, {vr(q + 4 * u, 4)}, {c}')
G = RING
a(f'''v_cmp_ne_u32 vcc, 0, {vr(vBAD)}
      s_mul_i32 {sr(sT0)}, {sr(sXI)}, 12288
      s_mul_i32 {sr(sT1)}, {sr(sW)}, 3072
      s_add_u32 {sr(sT0)}, {sr(sT0)}, {sr(sT1)}
      s_add_u32 {sr(sT0)}, {sr(sT0)}, {WS_PB}
      v_lshl_add_u32 v13, v1, 4, {sr(sT0)}
      s_cbranch_vccnz L_retryQ
      v_and_b32 v6, 31, v1
      v_lshlrev_b32 v6, 4, v6
      v_add_u32 v6, {X_MAX}, v6
      v_lshl_add_u32 v7, {sr(sW)}, 2, v6''')
stamp(5)
a(f'v_max3_f32 v8, {vr(SACC)}, {vr(SACC + 1)}, {vr(SACC + 2)}')
a(f'v_max3_f32 v9, {vr(SACC + 3)}, {vr(SACC + 4)}, {vr(SACC + 5)}')
for k in range(6, 14, 4):
    a(f'v_max3_f32 v8, v8, {vr(SACC + k)}, {vr(SACC + k + 1)}')
    a(f'v_max3_f32 v9, v9, {vr(SACC + k + 2)}, {vr(SACC + k + 3)}')
a(f'''v_max3_f32 v8, v8, {vr(SACC + 14)}, {vr(SACC + 15)}
      v_max_f32 v8, v8, v9
      v_mov_b32 v9, v8
      v_permlane32_swap_b32 v8, v9
      v_max_f32 v8, v8, v9
      ds_write_b32 v7, v8
      v_mov_b32 {vr(G + 3)}, {sr(sTAG)}
      v_mov_b32 {vr(G + 7)}, {sr(sTAG)}
      v_mov_b32 {vr(G + 11)}, {sr(sTAG)}
      v_cmp_lt_u32 vcc, 31, v1
      s_waitcnt lgkmcnt(0)
      s_barrier
      ds_read_b128 v[8:11], v6
      s_waitcnt lgkmcnt(0)
      v_max3_f32 v8, v8, v9, v10
      v_max_f32 v8, v8, v11''')
for k in range(16):
    a(f'v_sub_f32 {vr(SACC + k)}, {vr(SACC + k)}, v8')
for k in range(16):
    a(f'v_exp_f32 {vr(SACC + k)}, {vr(SACC + k)}')
for k, d in enumerate((0, 1, 2, 8, 4, 5, 6, 9)):
    a(f'v_cvt_pk_bf16_f32 {vr(G + d)}, {vr(SACC + 2 * k)}, {vr(SACC + 2 * k + 1)}')
    if d in (2, 6):
        a(f'buffer_store_dwordx4 {vr(G + d - 2, 4)}, v13, {sr(rWS, 4)}, 0 offen offset:{256 * (d - 2)} sc1')
for st in (8, 4, 2, 1):
    for k in range(st):
        a(f'v_add_f32 {vr(SACC + k)}, {vr(SACC + k)}, {vr(SACC + k + st)}')
a(f'''v_mov_b32 v9, {vr(SACC)}
      v_permlane32_swap_b32 v9, {vr(SACC)}
      v_add_f32 v9, v9, {vr(SACC)}
      v_cndmask_b32 {vr(G + 10)}, v8, v9, vcc
      buffer_store_dwordx4 {vr(G + 8, 4)}, v13, {sr(rWS, 4)}, 0 offen offset:2048 sc1''')
stamp(6)
a(f'''s_cmp_eq_u32 {sr(sROLE)}, 2
      s_cbranch_scc1 L_exit''')
for k in range(W2_IN_S, 16):
    w2_load(k)
tokW2 = a.vtok()
a(f'''; publish offset: OP + prod*12288 + w*3072 + l*16, prod = row (O) or 64 + row (F)
      s_lshl_b32 {sr(sT0)}, {sr(sROLE)}, 6
      s_add_u32 {sr(sT0)}, {sr(sT0)}, {sr(sROW)}
      s_mul_i32 {sr(sT0)}, {sr(sT0)}, 12288
      s_mul_i32 {sr(sT1)}, {sr(sW)}, 3072
      s_add_u32 {sr(sT0)}, {sr(sT0)}, {sr(sT1)}
      s_add_u32 {sr(sT0)}, {sr(sT0)}, {WS_OP}
      v_lshl_add_u32 v13, v1, 4, {sr(sT0)}
      v_mul_u32_u24 v12, 144, v5
      v_lshl_add_u32 v12, v4, 4, v12
      v_add_u32 v12, {X_CTXP}, v12
      s_cmp_eq_u32 {sr(sROLE)}, 1
      s_cbranch_scc1 L_F''')
vm_fork = a.vm

srd(rA, pWUV, 4 << 20)
a(f'''; w_uv lane offset: (128w + (l>>3))*8192 + row*128 + (((l&7) ^ 4*((l>>4)&1))*16)
      s_lshl_b32 {sr(sT0)}, {sr(sW)}, 20
      s_lshl_b32 {sr(sT1)}, {sr(sROW)}, 7
      s_add_u32 {sr(sT0)}, {sr(sT0)}, {sr(sT1)}
      v_lshrrev_b32 v6, 3, v1
      v_lshl_add_u32 v6, v6, 13, {sr(sT0)}
      v_and_b32 v7, 7, v1
      v_bfe_u32 v8, v1, 4, 1
      v_lshlrev_b32 v8, 2, v8
      v_xor_b32 v7, v7, v8
      v_lshl_add_u32 v6, v7, 4, v6
      s_mov_b32 m0, {sr(sRING)}
      s_mov_b32 {sr(sOFF)}, 0''')
for u in range(16):
    a(f'buffer_load_dwordx4 v6, {sr(rA, 4)}, {sr(sOFF)} offen nt lds')
    if u < 15:
        a(f'''s_addk_i32 m0, 0x400
              s_add_u32 {sr(sOFF)}, {sr(sOFF)}, 0x10000''')
a(f'''; transposing read address: ring + (4g + r)*128 + ((N ^ (r>>1))*64) + colhalf*32 + cc*8
      v_lshrrev_b32 v8, 5, v1
      v_bfe_u32 v9, v1, 2, 2
      v_lshl_add_u32 v10, v8, 2, v9
      v_lshl_add_u32 v10, v10, 7, {sr(sRING)}
      v_lshrrev_b32 v9, 1, v9
      v_lshl_add_u32 v10, v9, 6, v10
      v_bfe_u32 v9, v1, 4, 1
      v_lshl_add_u32 v10, v9, 5, v10
      v_and_b32 v9, 3, v1
      v_lshl_add_u32 {vr(vCA)}, v9, 3, v10
      v_xor_b32 {vr(vCA + 1)}, 64, {vr(vCA)}
      s_lshr_b32 {sr(sT0)}, {sr(sROW)}, 1
      s_mul_i32 {sr(sT0)}, {sr(sT0)}, 49152
      s_mul_i32 {sr(sK2)}, {sr(sW)}, 12288
      s_add_u32 {sr(sT2)}, {sr(sT0)}, {sr(sK2)}
      s_add_u32 {sr(sT0)}, {sr(sT2)}, {WS_CT}
      v_lshl_add_u32 v15, v1, 4, {sr(sT0)}
      s_lshl_b32 {sr(sT0)}, {sr(sW)}, 7
      s_add_u32 {sr(sT0)}, {sr(sT0)}, {X_WGT}
      v_and_b32 v9, 31, v1
      v_lshl_add_u32 v10, v9, 2, {sr(sT0)}
      v_lshl_add_u32 v11, v8, 4, {sr(sT0)}
      s_mul_i32 {sr(sT0)}, {sr(sW)}, 144
      s_add_u32 {sr(sT0)}, {sr(sT0)}, {X_CTXP}
      v_lshl_add_u32 v14, v1, 1, {sr(sT0)}''')
for t in range(12):
    a(f'v_add_u32 {vr(STGA + t)}, {sr(sK2)}, {vr(STGA + t)}')
ws_base(sT2, WS_CT + 12)
a.wait_vm(tokW2)
transpose_block(W2R, W2T)
transpose_block(W2R + 32, W2T + 32)
a('s_waitcnt vmcnt(0)')
for ks in range(8):
    for N in range(2):
        for hf in range(2):
            a(f'ds_read_b64_tr_b16 {ar(8 * ks + 4 * N + 2 * hf, 2)}, {vr(vCA + N)} offset:{(2 * ks + hf) * 1024}')
stamp(7)
poll('L_pollC', [384 * (4 * k + (k & 3)) for k in range(8)] + [384 * (4 * k + ((k + 2) & 3)) for k in range(6)])
a('L_loadC:')
a(f's_add_u32 {sr(sT0)}, {sr(sK2)}, {X_STG}')
for p in range(3):
    a(f'''s_add_u32 m0, {sr(sT0)}, {4096 * p}
          s_mov_b32 {sr(sOFF)}, {4096 * p}''')
    for i in range(4):
        a(f'buffer_load_dwordx4 v15, {sr(rWS, 4)}, {sr(sOFF)} offen offset:{1024 * i} sc1 lds')
stamp(8)
a(f'v_mov_b32 {vr(vBAD)}, 0')
spin_check()
a('s_waitcnt vmcnt(0)')
ltok = {}
for w2 in range(4):
    for i in (2, 0, 1):
        a(f'ds_read_b128 {vr(RING + 12 * w2 + 4 * i, 4)}, {vr(STGA + 3 * w2 + i)}')
        if w2 == 0 and i == 2:
            lt_stat = a.ltok()
    ltok[w2] = a.ltok()
WG = 240


def o_group(w2):
    q = RING + 12 * w2
    chk(vBAD, q)
    chk(vBAD, q + 4)
    a(f'''v_mov_b32 {vr(q + 3)}, {vr(q + 8)}
          v_mov_b32 {vr(q + 7)}, {vr(q + 9)}''')
    chk(vBAD, q + 8)
    for u in range(2):
        for N in range(2):
            c = '0' if (w2 == 0 and u == 0) else vr(SACC + 16 * N, 16)
            a(f'v_mfma_f32_32x32x16_bf16 {vr(SACC + 16 * N, 16)}, {vr(q + 4 * u, 4)}, {ar(8 * (2 * w2 + u) + 4 * N, 4)}, {c}')


a.wait_lg(ltok[0])
o_group(0)
a(f'''v_mov_b32 v6, {vr(RING + 10)}
      v_mov_b32 v7, {vr(RING + 10)}
      v_permlane32_swap_b32 v6, v7
      v_max_f32_dpp v8, v6, v6 quad_perm:[1,0,3,2] row_mask:0xf bank_mask:0xf
      v_max_f32_dpp v8, v8, v8 quad_perm:[2,3,0,1] row_mask:0xf bank_mask:0xf
      v_max_f32_dpp v8, v8, v8 row_half_mirror row_mask:0xf bank_mask:0xf
      v_sub_f32 v6, v6, v8
      v_exp_f32 v6, v6''')
a.wait_lg(ltok[1])
o_group(1)
a(f'''v_mul_f32 v7, v6, v7
      v_add_f32_dpp v7, v7, v7 quad_perm:[1,0,3,2] row_mask:0xf bank_mask:0xf
      v_add_f32_dpp v7, v7, v7 quad_perm:[2,3,0,1] row_mask:0xf bank_mask:0xf
      v_add_f32_dpp v7, v7, v7 row_half_mirror row_mask:0xf bank_mask:0xf
      v_rcp_f32 v7, v7
      v_mul_f32 v6, v6, v7
      ds_write_b32 v10, v6''')
for b in range(4):
    a(f'ds_read_b128 {vr(WG + 4 * b, 4)}, v11 offset:{32 * b}')
a.wait_lg(ltok[3])
o_group(2)
o_group(3)
a(f'''v_cmp_ne_u32 vcc, 0, {vr(vBAD)}
      s_waitcnt lgkmcnt(0)
      s_cbranch_vccnz L_loadC''')
YV = RING
for N in range(2):
    for b in range(4):
        a(f'v_mul_f32 {vr(YV + 4 * N + b)}, {vr(WG + 4 * b)}, {vr(SACC + 16 * N + 4 * b)}')
    for i in range(1, 4):
        for b in range(4):
            a(f'v_fmac_f32 {vr(YV + 4 * N + b)}, {vr(WG + 4 * b + i)}, {vr(SACC + 16 * N + 4 * b + i)}')
for b in range(4):
    a(f'v_permlane32_swap_b32 {vr(YV + b)}, {vr(YV + 4 + b)}')
for b in range(4):
    a(f'v_add_f32 {vr(YV + b)}, {vr(YV + b)}, {vr(YV + 4 + b)}')
a(f'''v_cvt_pk_bf16_f32 {vr(YV)}, {vr(YV)}, {vr(YV + 1)}
      v_cvt_pk_bf16_f32 {vr(YV + 2)}, {vr(YV + 2)}, {vr(YV + 3)}
      ds_write_b16 v14, {vr(YV)}
      ds_write_b16_d16_hi v14, {vr(YV)} offset:576
      ds_write_b16 v14, {vr(YV + 2)} offset:1152
      ds_write_b16_d16_hi v14, {vr(YV + 2)} offset:1728''')

a(f'''L_G2:
      s_waitcnt lgkmcnt(0)
      s_barrier
      ds_read_b128 v[4:7], v12
      ds_read_b128 v[8:11], v12 offset:64''')
OA = 32
G = 64
a(f'''v_mov_b32 {vr(G + 3)}, {sr(sTAG)}
      v_mov_b32 {vr(G + 7)}, {sr(sTAG)}
      v_mov_b32 {vr(G + 11)}, {sr(sTAG)}
      v_mov_b32 {vr(G + 10)}, 0
      s_waitcnt lgkmcnt(0)''')
for i in range(8):
    a(f'v_mfma_f32_16x16x32_bf16 {vr(OA + 4 * i, 4)}, v[4:7], {vr(W2T + 4 * i, 4)}, 0')
    a(f'v_mfma_f32_16x16x32_bf16 {vr(OA + 4 * i, 4)}, v[8:11], {vr(W2T + 32 + 4 * i, 4)}, {vr(OA + 4 * i, 4)}')
for i in range(8):
    o = OA + 4 * i
    a(f'''v_add_f32 {vr(o)}, {vr(o)}, {vr(o + 1)}
          v_add_f32 {vr(o + 2)}, {vr(o + 2)}, {vr(o + 3)}
          v_add_f32 {vr(G + VI[i])}, {vr(o)}, {vr(o + 2)}''')
    if i in (2, 5, 7):
        k = (2, 5, 7).index(i)
        a(f'buffer_store_dwordx4 {vr(G + 4 * k, 4)}, v13, {sr(rWS, 4)}, 0 offen offset:{1024 * k} sc1')
a('s_branch L_exit')

a('L_retryQ:')
spin_check()
a('''s_waitcnt vmcnt(0) lgkmcnt(0)
     s_barrier''')
qa_loads()
a('''s_waitcnt vmcnt(0)
     s_branch L_S''')

a.vm = vm_fork
FX, FACC, FR0, FR1, FTMP = 240, 16, 48, W2R, 4
a('L_F:')
a(f'''; 64-bit lane address: (n<8 ? w_gate : w_up) + (32G + 8w)*3584 + fb*128 + (n&7)*16
      v_lshl_add_u32 v6, v4, 2, {sr(sW)}
      v_mul_u32_u24 v6, {8 * 3584}, v6
      v_and_b32 v7, 7, v1
      v_lshl_add_u32 v6, v7, 4, v6
      s_lshl_b32 {sr(sT0)}, {sr(sROW)}, 7
      v_add_u32 v6, {sr(sT0)}, v6
      v_mov_b32 v7, 0
      v_cmp_gt_u32 vcc, 8, v5
      v_mov_b32 v8, {sr(pWU)}
      v_mov_b32 v9, {sr(pWU + 1)}
      v_mov_b32 v10, {sr(pWG)}
      v_mov_b32 v11, {sr(pWG + 1)}
      v_cndmask_b32 v8, v8, v10, vcc
      v_cndmask_b32 v9, v9, v11, vcc
      v_lshl_add_u64 v[14:15], v[6:7], 0, v[8:9]
      s_mov_b32 {sr(sK2)}, {2 * 3584}
      s_mov_b32 {sr(sK3)}, 0
      s_mov_b32 {sr(sT0)}, {122 * 3584}
      s_mov_b32 {sr(sT1)}, 0''')
x_loads(FX, 2, None)
tok_x = a.vtok()


def f_block(s, raw):
    for j in range(0, 8, 2):
        a(f'''global_load_dwordx4 {vr(raw + 4 * j, 4)}, v[14:15], off nt
              global_load_dwordx4 {vr(raw + 4 * j + 4, 4)}, v[14:15], off offset:3584 nt''')
        if j < 6:
            a(f'v_lshl_add_u64 v[14:15], v[14:15], 0, {sr(sK2, 2)}')
        elif s < 3:
            a(f'v_lshl_add_u64 v[14:15], v[14:15], 0, {sr(sT0, 2)}')
    return a.vtok()


tokF = [f_block(0, FR0), f_block(1, FR0 + 32)]
a.wait_vm(tokW2)
transpose_block(W2R, W2T)
transpose_block(W2R + 32, W2T + 32)
tokF += [f_block(2, FR1), f_block(3, FR1 + 32)]
a.wait_vm(tok_x)
a(f'''s_lshl_b32 {sr(sT0)}, {sr(sW)}, 11
      s_add_u32 {sr(sT0)}, {sr(sT0)}, {X_FP}
      v_lshl_add_u32 v14, v4, 9, {sr(sT0)}
      v_lshl_add_u32 v14, v5, 5, v14
      s_lshl_b32 {sr(sT0)}, {sr(sW)}, 9
      s_add_u32 {sr(sT0)}, {sr(sT0)}, {X_FP}
      v_lshl_add_u32 v15, v1, 2, {sr(sT0)}''')
ln_stats(FX, 2, 3, 8)
for s in range(4):
    a.wait_vm(tokF[s])
    tgemv_block((FR0, FR0 + 32, FR1, FR1 + 32)[s], FX + 4 * s, FACC, FTMP, s == 0)
stamp(7)
a('s_waitcnt lgkmcnt(0)')
ln_apply(FACC, 2, 3, FR0)
a(f'''ds_write_b128 v14, {vr(FR0, 4)}
      ds_write_b128 v14, {vr(FR0 + 4, 4)} offset:16
      s_mul_i32 {sr(sT0)}, {sr(sW)}, 576
      s_add_u32 {sr(sT0)}, {sr(sT0)}, {X_CTXP}
      v_lshl_add_u32 v14, v1, 1, {sr(sT0)}
      v_mov_b32 v2, 0
      ds_write_b16 v14, v2 offset:144
      ds_write_b16 v14, v2 offset:288
      ds_write_b16 v14, v2 offset:432
      s_waitcnt lgkmcnt(0)
      s_barrier''')
for wv in range(4):
    a(f'ds_read2st64_b32 {vr(4 + 2 * wv, 2)}, v15 offset0:{8 * wv} offset1:{8 * wv + 1}')
C1 = struct.unpack('<I', struct.pack('<f', 0.044715))[0]
C2 = struct.unpack('<I', struct.pack('<f', -2.0 * 0.7978845608028654 * 1.4426950408889634))[0]
a(f'''s_waitcnt lgkmcnt(0)
      v_add_f32 v4, v4, v6
      v_add_f32 v8, v8, v10
      v_add_f32 v5, v5, v7
      v_add_f32 v9, v9, v11
      v_add_f32 v4, v4, v8                              ; g
      v_add_f32 v5, v5, v9                              ; u
      v_mul_f32 v6, v4, v4
      v_mul_f32 v6, {C1:#x}, v6
      v_fma_f32 v6, v6, v4, v4                          ; g + 0.044715 g^3
      v_mul_f32 v6, {C2:#x}, v6
      v_exp_f32 v6, v6                                  ; exp(-2z)
      v_add_f32 v6, 1.0, v6
      v_rcp_f32 v6, v6
      v_mul_f32 v4, v4, v6
      v_mul_f32 v4, v4, v5
      v_cvt_pk_bf16_f32 v4, v4, v4
      ds_write_b16 v14, v4
      s_branch L_G2''')

a('L_exit:')
if DIAG:
    stamp(9)
    a(f'''s_mov_b64 exec, -1
          s_waitcnt lgkmcnt(0)
          v_mov_b32 v2, 0''')
    for k in range(10):
        a(f'v_writelane_b32 v2, {sr(sSTAMP + 2 * k)}, {k}')
    a(f'''v_writelane_b32 v2, {sr(sSPIN)}, 10
          s_getreg_b32 {sr(sT1)}, hwreg(HW_REG_XCC_ID)
          v_writelane_b32 v2, {sr(sT1)}, 11
          s_lshl_b32 {sr(sT0)}, s2, 2
          s_add_u32 {sr(sT0)}, {sr(sT0)}, {sr(sW)}
          s_lshl_b32 {sr(sT0)}, {sr(sT0)}, 7
          s_add_u32 {sr(sT0)}, {sr(sT0)}, {WS_ST}
          v_lshl_add_u32 v3, v1, 2, {sr(sT0)}
          s_mov_b64 exec, 0xffff
          buffer_store_dword v2, v3, {sr(rWS, 4)}, 0 offen''')
a('L_end:')
a('s_endpgm')

HEADER = open('cdna_kernels/' + NAME + '.s.ref').read().split('; Override launch')[0]
out = HEADER + f'''; One launch, 256 workgroups (one per CU), hand-offs through d_ws in 16-byte granules tagged with a per-launch epoch.
; @launch grid=(256,1,1) block=(256,1,1) lds={LDS_BYTES}
.amdgcn_target "amdgcn-amd-amdhsa--gfx950"
.text
.globl {NAME}_kernel
.p2align 8
.type {NAME}_kernel,@function
''' + a.text() + f'''.section .rodata,"a"
.p2align 6
.amdhsa_kernel {NAME}_kernel
  .amdhsa_next_free_vgpr 384
  .amdhsa_next_free_sgpr 102
  .amdhsa_accum_offset 256
  .amdhsa_group_segment_fixed_size 0
  .amdhsa_kernarg_size 104
  .amdhsa_user_sgpr_count 2
  .amdhsa_user_sgpr_kernarg_segment_ptr 1
  .amdhsa_system_sgpr_workgroup_id_x 1
.end_amdhsa_kernel
'''
dst = [x for x in sys.argv[1:] if not x.startswith('--')]
open(dst[0] if dst else 'cdna_kernels/' + NAME + '.s', 'w').write(out)
```

```python
import sys
from asmdsl import Asm, vr, ar, sr

NAME = 'parallel_sum__compressed_kv_cla__glu_gated_geglu__decode'
DIAG = '--diag' in sys.argv
NOPF = '--nopf' in sys.argv

WS_QA = 0x1000
WS_PB = 0x40000
WS_CT = 0x1C0000
WS_OP = 0x340000
WS_ST = 0x480000
WS_SIZE = 0x4A0000

X_RING = 26112
X_STG = 4 * X_RING
X_SCR = X_STG + 49152
X_MAX = X_SCR
X_WGT = X_SCR + 512
X_CTXP = X_SCR + 1024
X_FP = X_STG
Y_WUK = 131072
Y_ASM = Y_WUK + 2048
LDS_BYTES = 163840

pX, pCKV, pWQ, pWUK, pWUV, pWO, pWG, pWU, pWD, pOUT, pWS = 4, 6, 8, 10, 12, 14, 18, 20, 22, 24, 28
sW, sXCD, sI, sTAG = 30, 31, 32, 33
sT0, sT1 = 34, 35
rA, rB, rC, rWS, rD = 36, 40, 44, 48, 52
sOFF, sT2 = 56, 57
sPB = 58
sPD = 60
sSPIN, sSELLO, sSELHI = 76, 77, 78
sP0 = 79
sSTAMP = 80
sK0, sK1 = 16, 17
sK2, sK3 = 26, 27
sP1 = 3
SPIN_MAX = 1 << 16

a = Asm()
stamp_n = {'X': 0, 'Y': 0}


def stamp(k):
    if DIAG:
        a(f's_memrealtime {sr(sSTAMP + 2 * k, 2)}')


def srd(r, ptr, nbytes):
    a(f'''s_mov_b32 {sr(r)}, {sr(ptr)}
          s_and_b32 {sr(r + 1)}, {sr(ptr + 1)}, 0xffff
          s_mov_b32 {sr(r + 2)}, {nbytes:#x}
          s_mov_b32 {sr(r + 3)}, 0x20000''')


def poll(label, offs):
    a(f'{label}:')
    for k, o in enumerate(offs):
        a(f's_load_dword {sr(sPD + k)}, {sr(sPB, 2)}, {o:#x} glc')
    a(f'''s_add_u32 {sr(sSPIN)}, {sr(sSPIN)}, 1
          s_cmp_gt_u32 {sr(sSPIN)}, {SPIN_MAX}
          s_cbranch_scc1 L_exit
          s_waitcnt lgkmcnt(0)''')
    for k in range(len(offs)):
        a(f'''s_cmp_lg_u32 {sr(sPD + k)}, {sr(sTAG)}
              s_cbranch_scc1 {label}''')


def spin_check():
    a(f'''s_add_u32 {sr(sSPIN)}, {sr(sSPIN)}, 1
          s_cmp_gt_u32 {sr(sSPIN)}, {SPIN_MAX}
          s_cbranch_scc1 L_exit''')


def tgemv_block(raw, A, acc, tmp, first):
    for i in range(8):
        t = tmp + 4 * (i & 1)
        sel = sSELHI if i & 1 else sSELLO
        for k in range(4):
            a(f'v_perm_b32 {vr(t + k)}, {vr(raw + 4 * (2 * k + 1) + (i >> 1))}, {vr(raw + 4 * (2 * k) + (i >> 1))}, {sr(sel)}')
        c = '0' if first else vr(acc + 4 * i, 4)
        a(f'v_mfma_f32_16x16x32_bf16 {vr(acc + 4 * i, 4)}, {vr(A, 4)}, {vr(t, 4)}, {c}')


def transpose_block(raw, dst):
    for i in range(8):
        sel = sSELHI if i & 1 else sSELLO
        for k in range(4):
            a(f'v_perm_b32 {vr(dst + 4 * i + k)}, {vr(raw + 4 * (2 * k + 1) + (i >> 1))}, {vr(raw + 4 * (2 * k) + (i >> 1))}, {sr(sel)}')


def x_loads(XQ, vtmp, rot):
    a(f'''v_and_b32 {vr(vtmp)}, 3, v1
          v_xor_b32 {vr(vtmp)}, {sr(sW)}, {vr(vtmp)}
          v_lshlrev_b32 {vr(vtmp)}, 4, {vr(vtmp)}
          v_bfe_u32 {vr(vtmp + 1)}, v1, 2, 2
          v_lshl_add_u32 {vr(vtmp)}, {vr(vtmp + 1)}, 10, {vr(vtmp)}
          v_lshrrev_b32 {vr(vtmp + 1)}, 4, v1
          v_lshl_add_u32 {vr(vtmp)}, {vr(vtmp + 1)}, 6, {vr(vtmp)}''')
    for s in range(4):
        if rot is None:
            a(f'global_load_dwordx4 {vr(XQ + 4 * s, 4)}, {vr(vtmp)}, {sr(pX, 2)} offset:{256 * s}')
        else:
            a(f'''s_add_u32 {sr(sT0)}, {sr(rot)}, {s}
                  s_and_b32 {sr(sT0)}, {sr(sT0)}, 3
                  s_lshl_b32 {sr(sT0)}, {sr(sT0)}, 8
                  v_add_u32 {vr(vtmp + 1)}, {sr(sT0)}, {vr(vtmp)}
                  global_load_dwordx4 {vr(XQ + 4 * s, 4)}, {vr(vtmp + 1)}, {sr(pX, 2)}''')


def ln_stats(XQ, vMB, vRS, t):
    s0, s1, u0, u1 = t, t + 1, t + 2, t + 3
    a(f'''v_mov_b32 {vr(u0)}, 0x3f803f80
          v_mov_b32 {vr(s0)}, 0
          v_mov_b32 {vr(s1)}, 0''')
    for k in range(16):
        a(f'v_dot2c_f32_bf16 {vr(s0)}, {vr(XQ + k)}, {vr(u0)}')
    for k in range(16):
        a(f'v_dot2c_f32_bf16 {vr(s1)}, {vr(XQ + k)}, {vr(XQ + k)}')
    a(f'''v_and_b32 {vr(u1)}, 3, v1
          v_cmp_eq_u32 vcc, 1, {vr(u1)}''')
    for k in range(16):
        a(f'v_cndmask_b32 {vr(XQ + k)}, {vr(XQ + k)}, {vr(u0)}, vcc')
    for qp in ('[1,0,3,2]', '[2,3,0,1]'):
        for s in (s0, s1):
            a(f'v_add_f32_dpp {vr(s)}, {vr(s)}, {vr(s)} quad_perm:{qp} row_mask:0xf bank_mask:0xf')
    for op in ('v_permlane16_swap_b32', 'v_permlane32_swap_b32'):
        a(f'''v_mov_b32 {vr(u0)}, {vr(s0)}
              v_mov_b32 {vr(u1)}, {vr(s1)}
              {op} {vr(u0)}, {vr(s0)}
              {op} {vr(u1)}, {vr(s1)}
              v_add_f32 {vr(s0)}, {vr(s0)}, {vr(u0)}
              v_add_f32 {vr(s1)}, {vr(s1)}, {vr(u1)}''')
    a(f'''v_mul_f32 {vr(s0)}, 0x3b000000, {vr(s0)}
          v_mul_f32 {vr(s1)}, 0x3b000000, {vr(s1)}
          v_fma_f32 {vr(s1)}, -{vr(s0)}, {vr(s0)}, {vr(s1)}   ; var
          v_max_f32 {vr(s1)}, 0, {vr(s1)}
          v_cvt_pk_bf16_f32 {vr(s1)}, {vr(s1)}, {vr(s0)}
          v_and_b32 {vr(s0)}, 0xffff0000, {vr(s1)}        ; bf16(mean)
          v_lshlrev_b32 {vr(s1)}, 16, {vr(s1)}            ; bf16(var)
          v_add_f32 {vr(s1)}, 0x3727c5ac, {vr(s1)}        ; + 1e-5
          v_cvt_pk_bf16_f32 {vr(s1)}, {vr(s1)}, {vr(s1)}
          v_lshlrev_b32 {vr(s1)}, 16, {vr(s1)}
          v_sqrt_f32 {vr(s1)}, {vr(s1)}
          v_cvt_pk_bf16_f32 {vr(s1)}, {vr(s1)}, {vr(s1)}
          v_lshlrev_b32 {vr(s1)}, 16, {vr(s1)}
          v_rcp_f32 {vr(s1)}, {vr(s1)}
          v_xor_b32 {vr(s0)}, 0x80000000, {vr(s0)}
          v_and_b32 {vr(u0)}, 0x30, v1
          ds_bpermute_b32 {vr(vMB)}, {vr(u0)}, {vr(s0)}
          ds_bpermute_b32 {vr(vRS)}, {vr(u0)}, {vr(s1)}''')


def ln_apply(acc, vMB, vRS, dst):
    for i in range(8):
        a(f'v_fma_f32 {vr(dst + i)}, {vr(vMB)}, {vr(acc + 4 * i + 1)}, {vr(acc + 4 * i)}')
    for i in range(8):
        a(f'v_mul_f32 {vr(dst + i)}, {vr(vRS)}, {vr(dst + i)}')


def chk(bad, q):
    a(f'v_bitop3_b32 {vr(bad)}, {vr(bad)}, {vr(q + 3)}, {sr(sTAG)} bitop3:0xf6')


def make_tag():
    a(f'''s_mul_i32 {sr(sTAG)}, {sr(sTAG)}, 0x9e3779b1
          s_add_u32 {sr(sTAG)}, {sr(sTAG)}, 0x7f4a7c15''')


def ws_base(off_sgpr, const):
    a(f'''s_add_u32 {sr(sT0)}, {sr(off_sgpr)}, {const:#x}
          s_add_u32 {sr(sPB)}, {sr(pWS)}, {sr(sT0)}
          s_addc_u32 {sr(sPB + 1)}, {sr(pWS + 1)}, 0''')


def pos_expr(dst, g, t, f, tmp):
    a(f'''v_lshlrev_b32 {vr(tmp)}, 2, {vr(g)}
          v_add_u32 {vr(tmp)}, {vr(tmp)}, {vr(t)}
          v_add_u32 {vr(tmp)}, 8, {vr(tmp)}               ; t>=8: 16 + (t-8) + 4g
          v_lshl_add_u32 {vr(dst)}, {vr(g)}, 3, {vr(t)}   ; t<8 : 8g + t
          v_cmp_lt_u32 vcc, 7, {vr(t)}
          v_cndmask_b32 {vr(dst)}, {vr(dst)}, {vr(tmp)}, vcc
          v_xor_b32 {vr(dst)}, {sr(f)}, {vr(dst)}
          v_lshlrev_b32 {vr(dst)}, 4, {vr(dst)}''')


a(f'{NAME}_kernel:')
stamp(0)
a(f'''s_load_dwordx16 s[4:19], s[0:1], 0
      s_load_dwordx8 s[20:27], s[0:1], 64
      s_load_dwordx2 s[28:29], s[0:1], 96
      s_cmp_ge_u32 s2, 256
      s_cbranch_scc1 L_end
      v_lshrrev_b32 v2, 6, v0
      v_and_b32 v1, 63, v0
      v_readfirstlane_b32 {sr(sW)}, v2
      s_and_b32 {sr(sXCD)}, s2, 7
      s_lshr_b32 {sr(sI)}, s2, 4
      s_getpc_b64 {sr(sPB, 2)}
L_pc:
      s_lshr_b32 {sr(sT0)}, s2, 3
      s_lshl_b32 {sr(sT0)}, {sr(sT0)}, 10
      v_lshrrev_b32 v3, 5, v0
      v_lshl_add_u32 v3, v3, 7, {sr(sT0)}
      v_min_u32 v3, L_end-L_pc, v3
      {'' if NOPF else f'global_load_dword v2, v3, {sr(sPB, 2)}'}
      s_mov_b32 {sr(sSPIN)}, 0
      s_mov_b32 {sr(sSELLO)}, 0x05040100
      s_mov_b32 {sr(sSELHI)}, 0x07060302
      s_bitcmp1_b32 s2, 3
      s_cbranch_scc1 L_X''')
vm_entry = a.vm

XQ, ACC, WQ, WUK, TMP = 16, 32, 64, 192, 224
vMB, vRS = 12, 13
sH, sCQ = sP0, sP1
a(f'''s_lshr_b32 {sr(sH)}, {sr(sI)}, 2
      s_lshl_b32 {sr(sT0)}, {sr(sXCD)}, 2
      s_add_u32 {sr(sH)}, {sr(sH)}, {sr(sT0)}          ; h = 4*xcd + i/4
      s_and_b32 {sr(sCQ)}, {sr(sI)}, 3
      v_lshrrev_b32 v4, 4, v1
      v_and_b32 v5, 15, v1
      s_lshl_b32 {sr(sT0)}, {sr(sW)}, 16
      s_lshl_b32 {sr(sT1)}, {sr(sH)}, 8
      s_add_u32 {sr(sT0)}, {sr(sT0)}, {sr(sT1)}
      v_lshl_add_u32 v6, v4, 18, {sr(sT0)}
      v_lshl_add_u32 v6, v5, 4, v6
      s_lshl_b32 {sr(sT0)}, {sr(sCQ)}, 20
      s_add_u32 {sr(sT1)}, {sr(sT1)}, {sr(sT0)}
      s_lshl_b32 {sr(sT0)}, {sr(sW)}, 18
      s_add_u32 {sr(sT1)}, {sr(sT1)}, {sr(sT0)}
      v_lshl_add_u32 v7, v4, 13, {sr(sT1)}
      v_xor_b32 v8, v4, v5
      v_lshl_add_u32 v8, v8, 4, v7
      v_xor_b32 v9, 64, v8
      v_xor_b32 v10, 0x80, v8
      v_xor_b32 v11, 0xc0, v8
      s_waitcnt lgkmcnt(0)''')
a(f's_load_dword {sr(sTAG)}, {sr(pWS, 2)}, 0')
x_loads(XQ, 14, sCQ)
tok_x = a.vtok()
srd(rA, pWQ, 4 << 20)
srd(rB, pWUK, 4 << 20)


def wq_block(s):
    a(f'''s_add_u32 {sr(sOFF)}, {sr(sCQ)}, {s}
          s_and_b32 {sr(sOFF)}, {sr(sOFF)}, 3
          s_lshl_b32 {sr(sOFF)}, {sr(sOFF)}, 20''')
    for j in range(8):
        a(f'buffer_load_dwordx4 {vr(WQ + 32 * s + 4 * j, 4)}, v6, {sr(rA, 4)}, {sr(sOFF)} offen nt')
        if j < 7:
            a(f's_addk_i32 {sr(sOFF)}, 0x2000')
    return a.vtok()


tok_wq = [wq_block(0)]
a(f'''s_lshl_b32 {sr(sT0)}, {sr(sW)}, 13
      s_add_u32 m0, {sr(sT0)}, {Y_WUK}
      s_mov_b32 {sr(sOFF)}, 0''')
for u in range(8):
    a(f'buffer_load_dwordx4 {vr(8 + (u >> 1))}, {sr(rB, 4)}, {sr(sOFF)} offen nt lds')
    if u < 7:
        a(f'''s_addk_i32 m0, 0x400
              s_add_u32 {sr(sOFF)}, {sr(sOFF)}, 0x8000''')
tok_wuk = a.vtok()
for s in range(1, 4):
    tok_wq.append(wq_block(s))
stamp(1)
srd(rWS, pWS, WS_SIZE)
srd(rC, pCKV, 16 << 20)
a.wait_vm(tok_x)
ln_stats(XQ, vMB, vRS, 8)
a(f'''s_lshl_b32 {sr(sT0)}, {sr(sW)}, 13
      s_add_u32 {sr(sT0)}, {sr(sT0)}, {Y_WUK}
      v_lshrrev_b32 v8, 2, v5
      v_lshl_add_u32 v8, v8, 11, {sr(sT0)}
      v_and_b32 v9, 3, v5
      v_lshl_add_u32 v8, v9, 8, v8
      v_xor_b32 v9, v4, v5
      v_lshl_add_u32 v240, v9, 4, v8
      v_xor_b32 v241, 64, v240
      v_xor_b32 v242, 0x80, v240
      v_xor_b32 v243, 0xc0, v240
      v_and_b32 v8, 3, v5
      v_lshlrev_b32 v8, 13, v8
      v_lshrrev_b32 v10, 2, v5
      v_lshl_add_u32 v8, v10, 8, v8
      v_lshl_add_u32 v8, v9, 4, v8
      v_add_u32 v244, {Y_WUK}, v8
      v_xor_b32 v245, 64, v244
      v_xor_b32 v246, 0x80, v244
      v_xor_b32 v247, 0xc0, v244
      v_lshl_add_u32 v8, v4, 2, {sr(sW)}
      v_xor_b32 v8, v8, v5
      v_lshlrev_b32 v8, 4, v8
      v_lshl_add_u32 v8, v4, 8, v8
      v_add_u32 v248, {sr(sT0)}, v8''')
a.wait_vm(tok_wq[0])
tgemv_block(WQ, XQ, ACC, TMP, True)
a.wait_vm(tok_wuk)
for T in range(2):
    for s in range(4):
        a(f'ds_read_b128 {vr(WUK + 16 * T + 4 * s, 4)}, {vr(240 + s)} offset:{1024 * T}')
a(f'''s_waitcnt lgkmcnt(0)''')
make_tag()
a(f'''s_lshr_b32 {sr(sT1)}, {sr(sH)}, 1
      s_and_b32 {sr(sT1)}, {sr(sT1)}, 7
      s_mul_i32 {sr(sT0)}, {sr(sW)}, 3
      v_lshrrev_b32 v8, 1, v4
      v_and_b32 v9, 1, v4
      v_add_u32 v10, {sr(sT0)}, v9''')
pos_expr(249, 8, 10, sT1, 11)
a(f'''s_add_u32 {sr(sT0)}, {sr(sT0)}, 2
      v_mov_b32 v10, {sr(sT0)}''')
pos_expr(250, 8, 10, sT1, 11)
a(f'''v_lshl_add_u32 v250, v9, 2, v250
      v_lshrrev_b32 v8, 2, v5
      v_mul_u32_u24 v8, 384, v8
      v_add_u32 v8, {Y_ASM}, v8
      v_add_u32 v249, v8, v249
      v_add_u32 v250, v8, v250
      s_mul_i32 {sr(sT0)}, {sr(sW)}, 384
      s_add_u32 {sr(sT0)}, {sr(sT0)}, {Y_ASM}
      v_lshl_add_u32 v251, v1, 4, {sr(sT0)}
      s_mul_i32 {sr(sT0)}, {sr(sW)}, 49152
      s_mul_i32 {sr(sT1)}, {sr(sCQ)}, 12288
      s_add_u32 {sr(sT0)}, {sr(sT0)}, {sr(sT1)}
      s_mul_i32 {sr(sT1)}, {sr(sH)}, 384
      s_add_u32 {sr(sT0)}, {sr(sT0)}, {sr(sT1)}
      s_add_u32 {sr(sT0)}, {sr(sT0)}, {WS_QA}
      v_lshl_add_u32 v252, v1, 4, {sr(sT0)}
      s_lshl_b32 {sr(sT0)}, {sr(sH)}, 19
      s_lshl_b32 {sr(sT1)}, {sr(sW)}, 17
      s_add_u32 {sr(sT0)}, {sr(sT0)}, {sr(sT1)}
      s_lshl_b32 {sr(sT1)}, {sr(sCQ)}, 8
      s_add_u32 {sr(sT0)}, {sr(sT0)}, {sr(sT1)}
      v_lshlrev_b32 v8, 2, v4
      v_xor_b32 v8, v8, v5
      v_lshl_add_u32 v8, v8, 4, {sr(sT0)}
      v_lshl_add_u32 v253, v4, 10, v8''')

v_issued = 0


def v_loads(n):
    global v_issued
    for _ in range(n):
        u = v_issued
        if u == 0:
            a(f'''s_lshl_b32 m0, {sr(sW)}, 15
                  s_mov_b32 {sr(sOFF)}, 0''')
        else:
            a(f'''s_addk_i32 m0, 0x400
                  s_addk_i32 {sr(sOFF)}, 0x1000''')
        a(f'buffer_load_dwordx4 v253, {sr(rC, 4)}, {sr(sOFF)} offen nt lds')
        v_issued += 1


for s in range(1, 4):
    a.wait_vm(tok_wq[s])
    if s == 3:
        stamp(2)
        v_loads(4)
    tgemv_block(WQ + 32 * s, XQ + 4 * s, ACC, TMP, False)
ln_apply(ACC, vMB, vRS, TMP)
for k in range(4):
    a(f'v_cvt_pk_bf16_f32 {vr(TMP + 8 + k)}, {vr(TMP + 2 * k)}, {vr(TMP + 2 * k + 1)}')
a(f'''ds_write_b128 v248, {vr(TMP + 8, 4)}
      s_waitcnt lgkmcnt(0)
      s_barrier''')
for s in range(4):
    a(f'ds_read_b128 {vr(XQ + 4 * s, 4)}, {vr(244 + s)}')
for s in range(4):
    a(f's_waitcnt lgkmcnt({3 - s})')
    for T in range(2):
        c = '0' if s == 0 else vr(ACC + 4 * T, 4)
        a(f'v_mfma_f32_16x16x32_bf16 {vr(ACC + 4 * T, 4)}, {vr(WUK + 16 * T + 4 * s, 4)}, {vr(XQ + 4 * s, 4)}, {c}')
for qp in ('[1,0,3,2]', '[2,3,0,1]'):
    for k in range(8):
        a(f'v_add_f32_dpp {vr(ACC + k)}, {vr(ACC + k)}, {vr(ACC + k)} quad_perm:{qp} row_mask:0xf bank_mask:0xf')
import struct
SC = struct.unpack('<I', struct.pack('<f', 128 ** -0.5 * 1.4426950408889634))[0]
for k in range(8):
    a(f'v_mul_f32 {vr(ACC + k)}, {SC:#x}, {vr(ACC + k)}')
for k in range(4):
    a(f'v_cvt_pk_bf16_f32 {vr(TMP + k)}, {vr(ACC + 2 * k)}, {vr(ACC + 2 * k + 1)}')
a(f'''ds_write_b128 v249, {vr(TMP, 4)}
      ds_write_b32 v250, {vr(TMP + 3)}
      s_waitcnt lgkmcnt(0)
      s_barrier
      ds_read_b128 {vr(TMP + 4, 4)}, v251
      v_cmp_gt_u32 vcc, 24, v1
      s_waitcnt lgkmcnt(0)
      v_mov_b32 {vr(TMP + 7)}, {sr(sTAG)}
      s_mov_b64 exec, vcc
      buffer_store_dwordx4 {vr(TMP + 4, 4)}, v252, {sr(rWS, 4)}, 0 offen sc1
      s_mov_b64 exec, -1''')
stamp(3)

v_loads(32 - v_issued)
PACC, PRING = 32, 96
vBAD = 31
a(f'''v_lshrrev_b32 v8, 5, v1
      v_bfe_u32 v9, v1, 2, 2
      v_lshlrev_b32 v10, 10, v8
      v_lshl_add_u32 v10, v9, 8, v10
      v_xor_b32 v9, {sr(sW)}, v9
      v_lshl_add_u32 v10, v9, 6, v10
      v_bfe_u32 v9, v1, 4, 1
      v_lshl_add_u32 v10, v9, 5, v10
      v_and_b32 v9, 3, v1
      v_lshl_add_u32 v240, v9, 3, v10
      v_add_u32 v241, 0x10000, v240
      s_lshl_b32 {sr(sT0)}, {sr(sH)}, 2
      s_mul_i32 {sr(sT0)}, {sr(sT0)}, 12288
      s_mul_i32 {sr(sT1)}, {sr(sW)}, 3072
      s_add_u32 {sr(sT2)}, {sr(sT0)}, {sr(sT1)}
      s_add_u32 {sr(sT0)}, {sr(sT2)}, {WS_PB}
      v_lshl_add_u32 v242, v1, 4, {sr(sT0)}
      v_lshlrev_b32 v243, 4, v1''')
a(f'''s_lshl_b32 {sr(sT0)}, {sr(sCQ)}, 8
      s_add_u32 {sr(sT2)}, {sr(sT2)}, {sr(sT0)}''')
ws_base(sT2, WS_PB + 2048 + 240 + 12)
a(f'''s_lshr_b32 {sr(sT1)}, {sr(sH)}, 1
      s_and_b32 {sr(sT1)}, {sr(sT1)}, 7
      s_mul_i32 {sr(sT0)}, {sr(sW)}, 3
      v_and_b32 v9, 31, v1
      v_mul_u32_u24 v9, 400, v9
      v_add_u32 v9, {Y_WUK}, v9''')
for i in range(3):
    a(f'''s_add_u32 {sr(sT2)}, {sr(sT0)}, {i}
          v_mov_b32 v10, {sr(sT2)}''')
    pos_expr(244 + i, 8, 10, sT1, 11)
    a(f'v_add_u32 {vr(244 + i)}, v9, {vr(244 + i)}')
a(f'''s_mul_i32 {sr(sT1)}, {sr(sCQ)}, 12288
      s_mul_i32 {sr(sT2)}, {sr(sH)}, 384
      s_add_u32 {sr(sT1)}, {sr(sT1)}, {sr(sT2)}
      s_add_u32 {sr(sT1)}, {sr(sT1)}, {WS_CT}
      s_lshl_b32 {sr(sT0)}, {sr(sT0)}, 6''')
for i in range(3):
    a(f'''v_add_u32 v9, {sr(sT0)}, v1
          v_add_u32 v9, {64 * i}, v9
          v_mul_u32_u24 v10, 2731, v9
          v_lshrrev_b32 v10, 16, v10                      ; row
          v_mul_u32_u24 v11, 24, v10
          v_sub_u32 v9, v9, v11                           ; pos
          v_lshlrev_b32 v9, 4, v9
          v_mul_u32_u24 v11, 400, v10
          v_add_u32 v11, v11, v9
          v_add_u32 {vr(247 + i)}, {Y_WUK}, v11
          v_mul_u32_u24 v11, 49152, v10
          v_add3_u32 {vr(250 + i)}, v11, v9, {sr(sT1)}''')
a(f'''s_waitcnt vmcnt(0)
      s_barrier''')
stamp(4)
for tau in range(16):
    for u in range(2):
        for hf in range(2):
            idx = 8 * tau + 4 * u + 2 * hf
            base = 240 if idx < 64 else 241
            a(f'ds_read_b64_tr_b16 {ar(8 * tau + 4 * u + 2 * hf, 2)}, {vr(base)} offset:{(idx & 63) * 1024}')
a(f'''s_waitcnt lgkmcnt(0)
      s_barrier''')
stamp(5)
poll('L_pollP', [12288 * p for p in range(4)])
a('L_loadP:')
a(f's_mul_i32 {sr(sT0)}, {sr(sW)}, 3072')
tokP = []
for p in range(4):
    a(f'''s_add_u32 m0, {sr(sT0)}, {12288 * p}
          s_mov_b32 {sr(sOFF)}, {12288 * p}''')
    for i in range(3):
        a(f'buffer_load_dwordx4 v242, {sr(rWS, 4)}, {sr(sOFF)} offen offset:{1024 * i} sc1 lds')
    tokP.append(a.vtok())
stamp(6)
a(f'v_mov_b32 {vr(vBAD)}, 0')
vM, vL, vF = 144, 148, 152
DEPTH = 2
ltok = {}


def p_reads(tau):
    if tau % 4 == 0:
        a.wait_vm(tokP[tau // 4])
        a('s_barrier')
    q = PRING + 12 * (tau % 4)
    for i in range(3):
        a(f'ds_read_b128 {vr(q + 4 * i, 4)}, v243 offset:{3072 * tau + 1024 * i}')
    ltok[tau] = a.ltok()


for tau in range(DEPTH):
    p_reads(tau)
for tau in range(16):
    if tau + DEPTH < 16:
        p_reads(tau + DEPTH)
    q = PRING + 12 * (tau % 4)
    p = tau // 4
    a.wait_lg(ltok[tau])
    chk(vBAD, q)
    chk(vBAD, q + 4)
    a(f'''v_mov_b32 {vr(q + 3)}, {vr(q + 8)}
          v_mov_b32 {vr(q + 7)}, {vr(q + 9)}''')
    chk(vBAD, q + 8)
    if tau % 4 == 0:
        a(f'''v_mov_b32 {vr(vM + p)}, {vr(q + 10)}
              v_mov_b32 {vr(vL + p)}, {vr(q + 10)}''')
    else:
        a(f'v_add_f32 {vr(vL + p)}, {vr(vL + p)}, {vr(q + 10)}')
    for u in range(2):
        c = '0' if (tau % 4 == 0 and u == 0) else vr(PACC + 16 * p, 16)
        a(f'v_mfma_f32_32x32x16_bf16 {vr(PACC + 16 * p, 16)}, {ar(8 * tau + 4 * u, 4)}, {vr(q + 4 * u, 4)}, {c}')
    if tau == 12:
        for p2 in range(4):
            a(f'v_mov_b32 {vr(vF + p2)}, {vr(vM + p2)}')
        for p2 in range(4):
            a(f'v_permlane32_swap_b32 {vr(vM + p2)}, {vr(vF + p2)}')
        a(f'''v_max3_f32 v8, {vr(vM)}, {vr(vM + 1)}, {vr(vM + 2)}
              v_max_f32 v8, v8, {vr(vM + 3)}''')
        for p2 in range(4):
            a(f'v_sub_f32 {vr(vF + p2)}, {vr(vM + p2)}, v8')
        for p2 in range(4):
            a(f'v_exp_f32 {vr(vF + p2)}, {vr(vF + p2)}')
    if tau == 13:
        for k in range(16):
            a(f'v_mul_f32 {vr(PACC + k)}, {vr(vF)}, {vr(PACC + k)}')
    if tau in (14, 15):
        p2 = tau - 13
        for k in range(16):
            a(f'v_fmac_f32 {vr(PACC + k)}, {vr(vF + p2)}, {vr(PACC + 16 * p2 + k)}')
a(f'''v_cmp_ne_u32 vcc, 0, {vr(vBAD)}
      v_mul_f32 v9, {vr(vF)}, {vr(vL)}
      v_fmac_f32 v9, {vr(vF + 1)}, {vr(vL + 1)}
      v_fmac_f32 v9, {vr(vF + 2)}, {vr(vL + 2)}
      v_fmac_f32 v9, {vr(vF + 3)}, {vr(vL + 3)}
      s_cbranch_vccnz L_retryP
      v_cmp_lt_u32 vcc, 31, v1''')
G = PRING
a(f'v_cndmask_b32 {vr(G + 10)}, v8, v9, vcc')
for k in range(16):
    a(f'v_fmac_f32 {vr(PACC + k)}, {vr(vF + 3)}, {vr(PACC + 48 + k)}')
for k, d in enumerate((0, 1, 2, 8, 4, 5, 6, 9)):
    a(f'v_cvt_pk_bf16_f32 {vr(G + d)}, {vr(PACC + 2 * k)}, {vr(PACC + 2 * k + 1)}')
for i in range(3):
    a(f'ds_write_b128 {vr(244 + i)}, {vr(G + 4 * i, 4)}')
a('''s_waitcnt lgkmcnt(0)
     s_barrier''')
for i in range(3):
    a(f'ds_read_b128 {vr(G + 12 + 4 * i, 4)}, {vr(247 + i)}')
for i in range(3):
    a(f'''s_waitcnt lgkmcnt({2 - i})
          v_mov_b32 {vr(G + 12 + 4 * i + 3)}, {sr(sTAG)}
          buffer_store_dwordx4 {vr(G + 12 + 4 * i, 4)}, {vr(250 + i)}, {sr(rWS, 4)}, 0 offen sc1''')
stamp(7)

sPHI = sP1
a(f'''s_cmp_lg_u32 {sr(sW)}, 0
      s_cbranch_scc1 L_exit
      s_cmp_ge_u32 {sr(sI)}, 8
      s_cbranch_scc1 L_exit
      s_lshl_b32 {sr(sPHI)}, {sr(sXCD)}, 3
      s_add_u32 {sr(sPHI)}, {sr(sPHI)}, {sr(sI)}
      s_lshr_b32 {sr(sT0)}, {sr(sPHI)}, 4              ; w'
      s_and_b32 {sr(sT1)}, {sr(sPHI)}, 15              ; Q'
      s_mul_i32 {sr(sT2)}, {sr(sT0)}, 3072
      s_lshl_b32 {sr(sOFF)}, {sr(sT1)}, 6
      s_add_u32 {sr(sT2)}, {sr(sT2)}, {sr(sOFF)}       ; w'*3072 + Q'*64
      s_lshl_b32 {sr(sT0)}, {sr(sT0)}, 8
      s_lshr_b32 {sr(sOFF)}, {sr(sT1)}, 2
      s_lshl_b32 {sr(sOFF)}, {sr(sOFF)}, 10
      s_add_u32 {sr(sT0)}, {sr(sT0)}, {sr(sOFF)}
      s_and_b32 {sr(sT1)}, {sr(sT1)}, 3
      s_lshl_b32 {sr(sT1)}, {sr(sT1)}, 6
      s_add_u32 {sr(sT0)}, {sr(sT0)}, {sr(sT1)}
      v_and_b32 v4, 3, v1
      v_lshl_add_u32 v5, v4, 4, {sr(sT0)}
      v_lshrrev_b32 v6, 4, v1
      v_lshl_add_u32 v5, v6, 2, v5
      global_load_dword v7, v5, {sr(pX, 2)}
      v_lshrrev_b32 v6, 2, v1
      v_mul_u32_u24 v8, 12288, v6
      v_lshl_add_u32 v8, v4, 4, v8
      s_add_u32 {sr(sT0)}, {sr(sT2)}, {WS_OP}
      v_add_u32 v8, {sr(sT0)}, v8
      v_cmp_gt_u32 vcc, 12, v6
      v_add_u32 v9, {16 * 12288}, v8
      v_cndmask_b32 v9, v8, v9, vcc
      v_cndmask_b32 v10, 0, 1.0, vcc''')
srd(rD, pOUT, 4096)
FQ, FS = 32, 16
ws_base(sT2, WS_OP + 64 * 12288 + 2048 + 12)
poll('L_pollF', [12288 * k for k in (0, 4, 9, 13, 18, 22, 27)])
a('L_loadF:')
a(f's_mov_b32 {sr(sOFF)}, {64 * 12288}')
for grp in range(2):
    for i in range(3):
        a(f'buffer_load_dwordx4 {vr(FQ + 12 * grp + 4 * i, 4)}, {vr(8 + grp)}, {sr(rWS, 4)}, {sr(sOFF)} offen offset:{1024 * i} sc1')
a(f'v_mov_b32 {vr(vBAD)}, 0')
spin_check()
a('s_waitcnt vmcnt(0)')
for k in range(6):
    chk(vBAD, FQ + 4 * k)
a(f'''v_cmp_ne_u32 vcc, 0, {vr(vBAD)}
      s_cbranch_vccnz L_loadF''')
VI = [0, 1, 2, 4, 5, 6, 8, 9]
for k in range(8):
    a(f'v_fma_f32 {vr(FS + k)}, v10, {vr(FQ + 12 + VI[k])}, {vr(FQ + VI[k])}')
ws_base(sT2, WS_OP + 2048 + 12)
stamp(8)
poll('L_pollO', [12288 * k for k in (0, 9, 18, 27, 36, 45, 54, 63, 4, 13, 22, 31, 32, 41, 50, 59)[:14]])
a('L_loadO:')
tokO = []
for grp in range(4):
    a(f's_mov_b32 {sr(sOFF)}, {16 * 12288 * grp}')
    for i in range(3):
        a(f'buffer_load_dwordx4 {vr(FQ + 12 * grp + 4 * i, 4)}, v8, {sr(rWS, 4)}, {sr(sOFF)} offen offset:{1024 * i} sc1')
    tokO.append(a.vtok())
a(f'v_mov_b32 {vr(vBAD)}, 0')
spin_check()
FT = 24 + 64
for grp in range(4):
    a.wait_vm(tokO[grp])
    for i in range(3):
        chk(vBAD, FQ + 12 * grp + 4 * i)
    for k in range(8):
        src = FS + k if grp == 0 else FT + k
        a(f'v_add_f32 {vr(FT + k)}, {vr(src)}, {vr(FQ + 12 * grp + VI[k])}')
a(f'''v_cmp_ne_u32 vcc, 0, {vr(vBAD)}
      s_cbranch_vccnz L_loadO''')
for k in range(4):
    a(f'v_permlane32_swap_b32 {vr(FT + k)}, {vr(FT + 4 + k)}')
for k in range(4):
    a(f'v_add_f32 {vr(FT + k)}, {vr(FT + k)}, {vr(FT + 4 + k)}')
for k in range(2):
    a(f'v_permlane16_swap_b32 {vr(FT + k)}, {vr(FT + 2 + k)}')
for k in range(2):
    a(f'v_add_f32 {vr(FT + k)}, {vr(FT + k)}, {vr(FT + 2 + k)}')
for r in (8, 4):
    for k in range(2):
        a(f'v_add_f32_dpp {vr(FT + k)}, {vr(FT + k)}, {vr(FT + k)} row_ror:{r} row_mask:0xf bank_mask:0xf')
a(f'''v_lshlrev_b32 v11, 16, v7
      v_and_b32 v7, 0xffff0000, v7
      v_add_f32 {vr(FT)}, {vr(FT)}, v11
      v_add_f32 {vr(FT + 1)}, {vr(FT + 1)}, v7
      v_cvt_pk_bf16_f32 v7, {vr(FT)}, {vr(FT + 1)}
      s_mov_b32 exec_lo, 0x000f000f
      s_mov_b32 exec_hi, 0x000f000f
      buffer_store_dword v7, v5, {sr(rD, 4)}, 0 offen
      s_mov_b64 exec, 1
      s_cmp_lg_u32 {sr(sPHI)}, 0
      s_cbranch_scc1 L_exit
      v_mov_b32 v4, {sr(sTAG)}
      v_mov_b32 v6, 0
      buffer_store_dword v4, v6, {sr(rWS, 4)}, 0 offen sc1
      s_branch L_exit''')
a('L_retryP:')
spin_check()
a('''s_waitcnt vmcnt(0) lgkmcnt(0)
     s_barrier
     s_branch L_loadP''')

a.vm = vm_entry
STGA, vCA, vCO = 16, 28, 30
SACC, RING, W2R, W2T = 32, 64, 112, 176
sXI, sRING = sP0, sP1
a(f'''L_X:
      s_lshl_b32 {sr(sXI)}, {sr(sXCD)}, 4
      s_add_u32 {sr(sXI)}, {sr(sXI)}, {sr(sI)}
      s_mul_i32 {sr(sRING)}, {sr(sW)}, {X_RING}
      v_lshrrev_b32 v4, 4, v1
      v_and_b32 v5, 15, v1
      s_lshl_b32 {sr(sT0)}, {sr(sXI)}, 17
      s_lshl_b32 {sr(sT1)}, {sr(sW)}, 15
      s_add_u32 {sr(sT0)}, {sr(sT0)}, {sr(sT1)}
      v_xor_b32 v6, v4, v5
      v_lshl_add_u32 v6, v6, 4, {sr(sT0)}
      v_lshl_add_u32 {vr(vCO)}, v4, 10, v6
      s_waitcnt lgkmcnt(0)''')
srd(rC, pCKV, 16 << 20)


def ckv_block(cq):
    a(f'''s_add_u32 m0, {sr(sRING)}, {(cq % 3) * 8704}
          s_mov_b32 {sr(sOFF)}, {256 * cq}''')
    for u in range(8):
        a(f'buffer_load_dwordx4 {vr(vCO)}, {sr(rC, 4)}, {sr(sOFF)} offen nt lds')
        if u < 7:
            a(f'''s_addk_i32 m0, 0x440
                  s_addk_i32 {sr(sOFF)}, 0x1000''')
    return a.vtok()


def ckv_reads(cq):
    for w2 in range(4):
        for u in range(2):
            a(f'ds_read_b128 {ar(4 * (8 * cq + 2 * w2 + u), 4)}, {vr(vCA + u)} offset:{(cq % 3) * 8704 + 64 * w2}')


tokC = [ckv_block(0)]
a(f's_load_dword {sr(sTAG)}, {sr(pWS, 2)}, 0')
srd(rWS, pWS, WS_SIZE)
a(f'''v_bfe_u32 v6, v1, 2, 3
      v_mul_u32_u24 v6, 1088, v6
      v_and_b32 v7, 3, v1
      v_lshl_add_u32 v6, v7, 8, v6
      v_lshrrev_b32 v8, 5, v1
      v_lshlrev_b32 v9, 1, v8
      v_xor_b32 v9, v9, v7
      v_lshl_add_u32 v6, v9, 4, v6
      v_add_u32 {vr(vCA)}, {sr(sRING)}, v6
      v_xor_b32 v9, 1, v9
      v_and_b32 v6, 0xffffffcf, v6
      v_lshl_add_u32 v6, v9, 4, v6
      v_add_u32 {vr(vCA + 1)}, {sr(sRING)}, v6''')
tokC.append(ckv_block(1))
a(f'''v_and_b32 v6, 31, v1
      v_mul_u32_u24 v6, 384, v6
      v_add_u32 v6, {X_STG}, v6
      v_bfe_u32 v7, v1, 1, 3
      v_lshl_add_u32 v9, v8, 7, v6
      v_lshl_add_u32 {vr(STGA)}, v7, 4, v9''')
for t in range(1, 8):
    a(f'v_xor_b32 {vr(STGA + t)}, {16 * t}, {vr(STGA)}')
a(f'''v_lshlrev_b32 v9, 2, v8
      v_xor_b32 v9, v9, v7
      v_lshl_add_u32 v9, v9, 4, v6
      v_add_u32 {vr(STGA + 8)}, 256, v9''')
for t in range(1, 4):
    a(f'v_xor_b32 {vr(STGA + 8 + t)}, {16 * t}, {vr(STGA + 8)}')
tokC.append(ckv_block(2))
stamp(1)
sROW, sROLE = sK0, sK1
a(f'''s_lshl_b32 {sr(sT0)}, {sr(sXCD)}, 3
      s_add_u32 {sr(sT0)}, {sr(sT0)}, {sr(sI)}
      s_sub_u32 {sr(sT1)}, {sr(sI)}, 8
      s_lshl_b32 {sr(sT1)}, {sr(sT1)}, 3
      s_add_u32 {sr(sT1)}, {sr(sT1)}, {sr(sXCD)}        ; fb
      s_cmp_lt_u32 {sr(sT1)}, 28
      s_cselect_b32 {sr(sROLE)}, 1, 2
      s_cselect_b32 {sr(rD + 2)}, {1792 * 1024}, 0
      s_cmp_lt_u32 {sr(sI)}, 8
      s_cselect_b32 {sr(sROW)}, {sr(sT0)}, {sr(sT1)}
      s_cselect_b32 {sr(sROLE)}, 0, {sr(sROLE)}
      s_cselect_b32 {sr(rD)}, {sr(pWO)}, {sr(pWD)}
      s_cselect_b32 {sr(rD + 1)}, {sr(pWO + 1)}, {sr(pWD + 1)}
      s_cselect_b32 {sr(rD + 2)}, {4 << 20}, {sr(rD + 2)}
      s_and_b32 {sr(rD + 1)}, {sr(rD + 1)}, 0xffff
      s_mov_b32 {sr(rD + 3)}, 0x20000
      s_lshl_b32 {sr(sT0)}, {sr(sROW)}, 16
      s_lshl_b32 {sr(sT1)}, {sr(sW)}, 8
      s_add_u32 {sr(sT0)}, {sr(sT0)}, {sr(sT1)}
      v_lshl_add_u32 v14, v4, 13, {sr(sT0)}
      v_lshl_add_u32 v14, v5, 4, v14
      s_lshr_b32 {sr(sT0)}, {sr(sXCD)}, 1
      s_mul_i32 {sr(sT0)}, {sr(sT0)}, 49152
      s_mul_i32 {sr(sT1)}, {sr(sW)}, 3072
      s_add_u32 {sr(sT2)}, {sr(sT0)}, {sr(sT1)}
      s_add_u32 {sr(sT0)}, {sr(sT2)}, {WS_QA}
      v_lshl_add_u32 v15, v1, 4, {sr(sT0)}''')
a(f'''s_and_b32 {sr(sT0)}, {sr(sXI)}, 3
      s_mul_i32 {sr(sT0)}, {sr(sT0)}, 12288
      s_bfe_u32 {sr(sT1)}, {sr(sXI)}, 0x30002
      s_mul_i32 {sr(sT1)}, {sr(sT1)}, 48
      s_add_u32 {sr(sT2)}, {sr(sT2)}, {sr(sT0)}
      s_add_u32 {sr(sT2)}, {sr(sT2)}, {sr(sT1)}''')
ws_base(sT2, WS_QA + 12)
a.wait_vm(tokC[0])
ckv_reads(0)
a('s_waitcnt lgkmcnt(0)')
make_tag()
tokC.append(ckv_block(3))
a.wait_vm(tokC[1])
ckv_reads(1)
stamp(2)
poll('L_pollQ', [k * 384 for k in range(8)])


def qa_loads():
    toks = []
    a(f'''s_mul_i32 {sr(sT0)}, {sr(sW)}, 3072
          s_add_u32 {sr(sT0)}, {sr(sT0)}, {X_STG}''')
    for cq in range(4):
        a(f'''s_add_u32 m0, {sr(sT0)}, {12288 * cq}
              s_mov_b32 {sr(sOFF)}, {12288 * cq}''')
        for i in range(3):
            a(f'buffer_load_dwordx4 v15, {sr(rWS, 4)}, {sr(sOFF)} offen offset:{1024 * i} sc1 lds')
        toks.append(a.vtok())
    return toks


def w2_load(k):
    s, j = k >> 3, k & 7
    a(f'''s_mov_b32 {sr(sOFF)}, {(32 * s + 4 * (j >> 2)) * 1024}
          buffer_load_dwordx4 {vr(W2R + 4 * k, 4)}, v14, {sr(rD, 4)}, {sr(sOFF)} offen offset:{1024 * (j & 3)} nt''')


stamp(3)
tokQ = qa_loads()
a.wait_vm(tokC[2])
ckv_reads(2)
a.wait_vm(tokC[3])
ckv_reads(3)
stamp(4)
a('L_S:')
a(f'v_mov_b32 {vr(vBAD)}, 0')
ltok = {}


def q_reads(gi):
    cq, w2 = gi >> 2, gi & 3
    if w2 == 0:
        a.wait_vm(tokQ[cq])
        a('s_barrier')
    q = RING + 12 * (gi % 4)
    for i in range(3):
        a(f'ds_read_b128 {vr(q + 4 * i, 4)}, {vr(STGA + 3 * w2 + i)} offset:{12288 * cq}')
    ltok[gi] = a.ltok()


W2_IN_S = 8
for gi in range(DEPTH):
    q_reads(gi)
for gi in range(16):
    if gi + DEPTH < 16:
        q_reads(gi + DEPTH)
    q = RING + 12 * (gi % 4)
    a.wait_lg(ltok[gi])
    chk(vBAD, q)
    chk(vBAD, q + 4)
    a(f'''v_mov_b32 {vr(q + 3)}, {vr(q + 8)}
          v_mov_b32 {vr(q + 7)}, {vr(q + 9)}''')
    chk(vBAD, q + 8)
    if gi % 2 == 0 and gi // 2 < W2_IN_S:
        w2_load(gi // 2)
    for u in range(2):
        c = '0' if (gi == 0 and u == 0) else vr(SACC, 16)
        a(f'v_mfma_f32_32x32x16_bf16 {vr(SACC, 16)}, {ar(4 * (2 * gi + u), 4)}, {vr(q + 4 * u, 4)}, {c}')
G = RING
a(f'''v_cmp_ne_u32 vcc, 0, {vr(vBAD)}
      s_mul_i32 {sr(sT0)}, {sr(sXI)}, 12288
      s_mul_i32 {sr(sT1)}, {sr(sW)}, 3072
      s_add_u32 {sr(sT0)}, {sr(sT0)}, {sr(sT1)}
      s_add_u32 {sr(sT0)}, {sr(sT0)}, {WS_PB}
      v_lshl_add_u32 v13, v1, 4, {sr(sT0)}
      s_cbranch_vccnz L_retryQ
      v_and_b32 v6, 31, v1
      v_lshlrev_b32 v6, 4, v6
      v_add_u32 v6, {X_MAX}, v6
      v_lshl_add_u32 v7, {sr(sW)}, 2, v6''')
stamp(5)
a(f'v_max3_f32 v8, {vr(SACC)}, {vr(SACC + 1)}, {vr(SACC + 2)}')
a(f'v_max3_f32 v9, {vr(SACC + 3)}, {vr(SACC + 4)}, {vr(SACC + 5)}')
for k in range(6, 14, 4):
    a(f'v_max3_f32 v8, v8, {vr(SACC + k)}, {vr(SACC + k + 1)}')
    a(f'v_max3_f32 v9, v9, {vr(SACC + k + 2)}, {vr(SACC + k + 3)}')
a(f'''v_max3_f32 v8, v8, {vr(SACC + 14)}, {vr(SACC + 15)}
      v_max_f32 v8, v8, v9
      v_mov_b32 v9, v8
      v_permlane32_swap_b32 v8, v9
      v_max_f32 v8, v8, v9
      ds_write_b32 v7, v8
      v_mov_b32 {vr(G + 3)}, {sr(sTAG)}
      v_mov_b32 {vr(G + 7)}, {sr(sTAG)}
      v_mov_b32 {vr(G + 11)}, {sr(sTAG)}
      v_cmp_lt_u32 vcc, 31, v1
      s_waitcnt lgkmcnt(0)
      s_barrier
      ds_read_b128 v[8:11], v6
      s_waitcnt lgkmcnt(0)
      v_max3_f32 v8, v8, v9, v10
      v_max_f32 v8, v8, v11''')
for k in range(16):
    a(f'v_sub_f32 {vr(SACC + k)}, {vr(SACC + k)}, v8')
for k in range(16):
    a(f'v_exp_f32 {vr(SACC + k)}, {vr(SACC + k)}')
for k, d in enumerate((0, 1, 2, 8, 4, 5, 6, 9)):
    a(f'v_cvt_pk_bf16_f32 {vr(G + d)}, {vr(SACC + 2 * k)}, {vr(SACC + 2 * k + 1)}')
    if d in (2, 6):
        a(f'buffer_store_dwordx4 {vr(G + d - 2, 4)}, v13, {sr(rWS, 4)}, 0 offen offset:{256 * (d - 2)} sc1')
for st in (8, 4, 2, 1):
    for k in range(st):
        a(f'v_add_f32 {vr(SACC + k)}, {vr(SACC + k)}, {vr(SACC + k + st)}')
a(f'''v_mov_b32 v9, {vr(SACC)}
      v_permlane32_swap_b32 v9, {vr(SACC)}
      v_add_f32 v9, v9, {vr(SACC)}
      v_cndmask_b32 {vr(G + 10)}, v8, v9, vcc
      buffer_store_dwordx4 {vr(G + 8, 4)}, v13, {sr(rWS, 4)}, 0 offen offset:2048 sc1''')
stamp(6)
a(f'''s_cmp_eq_u32 {sr(sROLE)}, 2
      s_cbranch_scc1 L_exit''')
for k in range(W2_IN_S, 16):
    w2_load(k)
tokW2 = a.vtok()
a(f'''; publish offset: OP + prod*12288 + w*3072 + l*16, prod = row (O) or 64 + row (F)
      s_lshl_b32 {sr(sT0)}, {sr(sROLE)}, 6
      s_add_u32 {sr(sT0)}, {sr(sT0)}, {sr(sROW)}
      s_mul_i32 {sr(sT0)}, {sr(sT0)}, 12288
      s_mul_i32 {sr(sT1)}, {sr(sW)}, 3072
      s_add_u32 {sr(sT0)}, {sr(sT0)}, {sr(sT1)}
      s_add_u32 {sr(sT0)}, {sr(sT0)}, {WS_OP}
      v_lshl_add_u32 v13, v1, 4, {sr(sT0)}
      v_mul_u32_u24 v12, 144, v5
      v_lshl_add_u32 v12, v4, 4, v12
      v_add_u32 v12, {X_CTXP}, v12
      s_cmp_eq_u32 {sr(sROLE)}, 1
      s_cbranch_scc1 L_F''')
vm_fork = a.vm

srd(rA, pWUV, 4 << 20)
a(f'''; w_uv lane offset: (128w + (l>>3))*8192 + row*128 + (((l&7) ^ 4*((l>>4)&1))*16)
      s_lshl_b32 {sr(sT0)}, {sr(sW)}, 20
      s_lshl_b32 {sr(sT1)}, {sr(sROW)}, 7
      s_add_u32 {sr(sT0)}, {sr(sT0)}, {sr(sT1)}
      v_lshrrev_b32 v6, 3, v1
      v_lshl_add_u32 v6, v6, 13, {sr(sT0)}
      v_and_b32 v7, 7, v1
      v_bfe_u32 v8, v1, 4, 1
      v_lshlrev_b32 v8, 2, v8
      v_xor_b32 v7, v7, v8
      v_lshl_add_u32 v6, v7, 4, v6
      s_mov_b32 m0, {sr(sRING)}
      s_mov_b32 {sr(sOFF)}, 0''')
for u in range(16):
    a(f'buffer_load_dwordx4 v6, {sr(rA, 4)}, {sr(sOFF)} offen nt lds')
    if u < 15:
        a(f'''s_addk_i32 m0, 0x400
              s_add_u32 {sr(sOFF)}, {sr(sOFF)}, 0x10000''')
a(f'''; transposing read address: ring + (4g + r)*128 + ((N ^ (r>>1))*64) + colhalf*32 + cc*8
      v_lshrrev_b32 v8, 5, v1
      v_bfe_u32 v9, v1, 2, 2
      v_lshl_add_u32 v10, v8, 2, v9
      v_lshl_add_u32 v10, v10, 7, {sr(sRING)}
      v_lshrrev_b32 v9, 1, v9
      v_lshl_add_u32 v10, v9, 6, v10
      v_bfe_u32 v9, v1, 4, 1
      v_lshl_add_u32 v10, v9, 5, v10
      v_and_b32 v9, 3, v1
      v_lshl_add_u32 {vr(vCA)}, v9, 3, v10
      v_xor_b32 {vr(vCA + 1)}, 64, {vr(vCA)}
      s_lshr_b32 {sr(sT0)}, {sr(sROW)}, 1
      s_mul_i32 {sr(sT0)}, {sr(sT0)}, 49152
      s_mul_i32 {sr(sK2)}, {sr(sW)}, 12288
      s_add_u32 {sr(sT2)}, {sr(sT0)}, {sr(sK2)}
      s_add_u32 {sr(sT0)}, {sr(sT2)}, {WS_CT}
      v_lshl_add_u32 v15, v1, 4, {sr(sT0)}
      s_lshl_b32 {sr(sT0)}, {sr(sW)}, 7
      s_add_u32 {sr(sT0)}, {sr(sT0)}, {X_WGT}
      v_and_b32 v9, 31, v1
      v_lshl_add_u32 v10, v9, 2, {sr(sT0)}
      v_lshl_add_u32 v11, v8, 4, {sr(sT0)}
      s_mul_i32 {sr(sT0)}, {sr(sW)}, 144
      s_add_u32 {sr(sT0)}, {sr(sT0)}, {X_CTXP}
      v_lshl_add_u32 v14, v1, 1, {sr(sT0)}''')
for t in range(12):
    a(f'v_add_u32 {vr(STGA + t)}, {sr(sK2)}, {vr(STGA + t)}')
a(f'''s_and_b32 {sr(sT0)}, {sr(sROW)}, 1
      s_lshl_b32 {sr(sT0)}, {sr(sT0)}, 8
      s_add_u32 {sr(sT2)}, {sr(sT2)}, {sr(sT0)}''')
ws_base(sT2, WS_CT + 12)
a.wait_vm(tokW2)
transpose_block(W2R, W2T)
transpose_block(W2R + 32, W2T + 32)
a('s_waitcnt vmcnt(0)')
for ks in range(8):
    for N in range(2):
        for hf in range(2):
            a(f'ds_read_b64_tr_b16 {ar(8 * ks + 4 * N + 2 * hf, 2)}, {vr(vCA + N)} offset:{(2 * ks + hf) * 1024}')
stamp(7)
poll('L_pollC', [384 * (4 * k + (k & 3)) for k in range(8)] + [384 * (4 * k + ((k + 2) & 3)) for k in range(6)])
a('L_loadC:')
a(f's_add_u32 {sr(sT0)}, {sr(sK2)}, {X_STG}')
for p in range(3):
    a(f'''s_add_u32 m0, {sr(sT0)}, {4096 * p}
          s_mov_b32 {sr(sOFF)}, {4096 * p}''')
    for i in range(4):
        a(f'buffer_load_dwordx4 v15, {sr(rWS, 4)}, {sr(sOFF)} offen offset:{1024 * i} sc1 lds')
stamp(8)
a(f'v_mov_b32 {vr(vBAD)}, 0')
spin_check()
a('s_waitcnt vmcnt(0)')
ltok = {}
for w2 in range(4):
    for i in (2, 0, 1):
        a(f'ds_read_b128 {vr(RING + 12 * w2 + 4 * i, 4)}, {vr(STGA + 3 * w2 + i)}')
        if w2 == 0 and i == 2:
            lt_stat = a.ltok()
    ltok[w2] = a.ltok()
WG = 240


def o_group(w2):
    q = RING + 12 * w2
    chk(vBAD, q)
    chk(vBAD, q + 4)
    a(f'''v_mov_b32 {vr(q + 3)}, {vr(q + 8)}
          v_mov_b32 {vr(q + 7)}, {vr(q + 9)}''')
    chk(vBAD, q + 8)
    for u in range(2):
        for N in range(2):
            c = '0' if (w2 == 0 and u == 0) else vr(SACC + 16 * N, 16)
            a(f'v_mfma_f32_32x32x16_bf16 {vr(SACC + 16 * N, 16)}, {vr(q + 4 * u, 4)}, {ar(8 * (2 * w2 + u) + 4 * N, 4)}, {c}')


a.wait_lg(ltok[0])
o_group(0)
a(f'''v_mov_b32 v6, {vr(RING + 10)}
      v_mov_b32 v7, {vr(RING + 10)}
      v_permlane32_swap_b32 v6, v7
      v_max_f32_dpp v8, v6, v6 quad_perm:[1,0,3,2] row_mask:0xf bank_mask:0xf
      v_max_f32_dpp v8, v8, v8 quad_perm:[2,3,0,1] row_mask:0xf bank_mask:0xf
      v_max_f32_dpp v8, v8, v8 row_half_mirror row_mask:0xf bank_mask:0xf
      v_sub_f32 v6, v6, v8
      v_exp_f32 v6, v6''')
a.wait_lg(ltok[1])
o_group(1)
a(f'''v_mul_f32 v7, v6, v7
      v_add_f32_dpp v7, v7, v7 quad_perm:[1,0,3,2] row_mask:0xf bank_mask:0xf
      v_add_f32_dpp v7, v7, v7 quad_perm:[2,3,0,1] row_mask:0xf bank_mask:0xf
      v_add_f32_dpp v7, v7, v7 row_half_mirror row_mask:0xf bank_mask:0xf
      v_rcp_f32 v7, v7
      v_mul_f32 v6, v6, v7
      ds_write_b32 v10, v6''')
for b in range(4):
    a(f'ds_read_b128 {vr(WG + 4 * b, 4)}, v11 offset:{32 * b}')
a.wait_lg(ltok[3])
o_group(2)
o_group(3)
a(f'''v_cmp_ne_u32 vcc, 0, {vr(vBAD)}
      s_waitcnt lgkmcnt(0)
      s_cbranch_vccnz L_loadC''')
YV = RING
for N in range(2):
    for b in range(4):
        a(f'v_mul_f32 {vr(YV + 4 * N + b)}, {vr(WG + 4 * b)}, {vr(SACC + 16 * N + 4 * b)}')
    for i in range(1, 4):
        for b in range(4):
            a(f'v_fmac_f32 {vr(YV + 4 * N + b)}, {vr(WG + 4 * b + i)}, {vr(SACC + 16 * N + 4 * b + i)}')
for b in range(4):
    a(f'v_permlane32_swap_b32 {vr(YV + b)}, {vr(YV + 4 + b)}')
for b in range(4):
    a(f'v_add_f32 {vr(YV + b)}, {vr(YV + b)}, {vr(YV + 4 + b)}')
a(f'''v_cvt_pk_bf16_f32 {vr(YV)}, {vr(YV)}, {vr(YV + 1)}
      v_cvt_pk_bf16_f32 {vr(YV + 2)}, {vr(YV + 2)}, {vr(YV + 3)}
      ds_write_b16 v14, {vr(YV)}
      ds_write_b16_d16_hi v14, {vr(YV)} offset:576
      ds_write_b16 v14, {vr(YV + 2)} offset:1152
      ds_write_b16_d16_hi v14, {vr(YV + 2)} offset:1728''')

a(f'''L_G2:
      s_waitcnt lgkmcnt(0)
      s_barrier
      ds_read_b128 v[4:7], v12
      ds_read_b128 v[8:11], v12 offset:64''')
OA = 32
G = 64
a(f'''v_mov_b32 {vr(G + 3)}, {sr(sTAG)}
      v_mov_b32 {vr(G + 7)}, {sr(sTAG)}
      v_mov_b32 {vr(G + 11)}, {sr(sTAG)}
      v_mov_b32 {vr(G + 10)}, 0
      s_waitcnt lgkmcnt(0)''')
for i in range(8):
    a(f'v_mfma_f32_16x16x32_bf16 {vr(OA + 4 * i, 4)}, v[4:7], {vr(W2T + 4 * i, 4)}, 0')
    a(f'v_mfma_f32_16x16x32_bf16 {vr(OA + 4 * i, 4)}, v[8:11], {vr(W2T + 32 + 4 * i, 4)}, {vr(OA + 4 * i, 4)}')
for i in range(8):
    o = OA + 4 * i
    a(f'''v_add_f32 {vr(o)}, {vr(o)}, {vr(o + 1)}
          v_add_f32 {vr(o + 2)}, {vr(o + 2)}, {vr(o + 3)}
          v_add_f32 {vr(G + VI[i])}, {vr(o)}, {vr(o + 2)}''')
    if i in (2, 5, 7):
        k = (2, 5, 7).index(i)
        a(f'buffer_store_dwordx4 {vr(G + 4 * k, 4)}, v13, {sr(rWS, 4)}, 0 offen offset:{1024 * k} sc1')
a('s_branch L_exit')

a('L_retryQ:')
spin_check()
a('''s_waitcnt vmcnt(0) lgkmcnt(0)
     s_barrier''')
qa_loads()
a('''s_waitcnt vmcnt(0)
     s_branch L_S''')

a.vm = vm_fork
FX, FACC, FR0, FR1, FTMP = 240, 16, 48, W2R, 4
a('L_F:')
a(f'''; 64-bit lane address: (n<8 ? w_gate : w_up) + (32G + 8w)*3584 + fb*128 + (n&7)*16
      v_lshl_add_u32 v6, v4, 2, {sr(sW)}
      v_mul_u32_u24 v6, {8 * 3584}, v6
      v_and_b32 v7, 7, v1
      v_lshl_add_u32 v6, v7, 4, v6
      s_lshl_b32 {sr(sT0)}, {sr(sROW)}, 7
      v_add_u32 v6, {sr(sT0)}, v6
      v_mov_b32 v7, 0
      v_cmp_gt_u32 vcc, 8, v5
      v_mov_b32 v8, {sr(pWU)}
      v_mov_b32 v9, {sr(pWU + 1)}
      v_mov_b32 v10, {sr(pWG)}
      v_mov_b32 v11, {sr(pWG + 1)}
      v_cndmask_b32 v8, v8, v10, vcc
      v_cndmask_b32 v9, v9, v11, vcc
      v_lshl_add_u64 v[14:15], v[6:7], 0, v[8:9]
      s_mov_b32 {sr(sK2)}, {2 * 3584}
      s_mov_b32 {sr(sK3)}, 0
      s_mov_b32 {sr(sT0)}, {122 * 3584}
      s_mov_b32 {sr(sT1)}, 0''')
x_loads(FX, 2, None)
tok_x = a.vtok()


def f_block(s, raw):
    for j in range(0, 8, 2):
        a(f'''global_load_dwordx4 {vr(raw + 4 * j, 4)}, v[14:15], off nt
              global_load_dwordx4 {vr(raw + 4 * j + 4, 4)}, v[14:15], off offset:3584 nt''')
        if j < 6:
            a(f'v_lshl_add_u64 v[14:15], v[14:15], 0, {sr(sK2, 2)}')
        elif s < 3:
            a(f'v_lshl_add_u64 v[14:15], v[14:15], 0, {sr(sT0, 2)}')
    return a.vtok()


tokF = [f_block(0, FR0), f_block(1, FR0 + 32)]
a.wait_vm(tokW2)
transpose_block(W2R, W2T)
transpose_block(W2R + 32, W2T + 32)
tokF += [f_block(2, FR1), f_block(3, FR1 + 32)]
a.wait_vm(tok_x)
a(f'''s_lshl_b32 {sr(sT0)}, {sr(sW)}, 11
      s_add_u32 {sr(sT0)}, {sr(sT0)}, {X_FP}
      v_lshl_add_u32 v14, v4, 9, {sr(sT0)}
      v_lshl_add_u32 v14, v5, 5, v14
      s_lshl_b32 {sr(sT0)}, {sr(sW)}, 9
      s_add_u32 {sr(sT0)}, {sr(sT0)}, {X_FP}
      v_lshl_add_u32 v15, v1, 2, {sr(sT0)}''')
ln_stats(FX, 2, 3, 8)
for s in range(4):
    a.wait_vm(tokF[s])
    tgemv_block((FR0, FR0 + 32, FR1, FR1 + 32)[s], FX + 4 * s, FACC, FTMP, s == 0)
stamp(7)
a('s_waitcnt lgkmcnt(0)')
ln_apply(FACC, 2, 3, FR0)
a(f'''ds_write_b128 v14, {vr(FR0, 4)}
      ds_write_b128 v14, {vr(FR0 + 4, 4)} offset:16
      s_mul_i32 {sr(sT0)}, {sr(sW)}, 576
      s_add_u32 {sr(sT0)}, {sr(sT0)}, {X_CTXP}
      v_lshl_add_u32 v14, v1, 1, {sr(sT0)}
      v_mov_b32 v2, 0
      ds_write_b16 v14, v2 offset:144
      ds_write_b16 v14, v2 offset:288
      ds_write_b16 v14, v2 offset:432
      s_waitcnt lgkmcnt(0)
      s_barrier''')
for wv in range(4):
    a(f'ds_read2st64_b32 {vr(4 + 2 * wv, 2)}, v15 offset0:{8 * wv} offset1:{8 * wv + 1}')
C1 = struct.unpack('<I', struct.pack('<f', 0.044715))[0]
C2 = struct.unpack('<I', struct.pack('<f', -2.0 * 0.7978845608028654 * 1.4426950408889634))[0]
a(f'''s_waitcnt lgkmcnt(0)
      v_add_f32 v4, v4, v6
      v_add_f32 v8, v8, v10
      v_add_f32 v5, v5, v7
      v_add_f32 v9, v9, v11
      v_add_f32 v4, v4, v8                              ; g
      v_add_f32 v5, v5, v9                              ; u
      v_mul_f32 v6, v4, v4
      v_mul_f32 v6, {C1:#x}, v6
      v_fma_f32 v6, v6, v4, v4                          ; g + 0.044715 g^3
      v_mul_f32 v6, {C2:#x}, v6
      v_exp_f32 v6, v6                                  ; exp(-2z)
      v_add_f32 v6, 1.0, v6
      v_rcp_f32 v6, v6
      v_mul_f32 v4, v4, v6
      v_mul_f32 v4, v4, v5
      v_cvt_pk_bf16_f32 v4, v4, v4
      ds_write_b16 v14, v4
      s_branch L_G2''')

a('L_exit:')
if DIAG:
    stamp(9)
    a(f'''s_mov_b64 exec, -1
          s_waitcnt lgkmcnt(0)
          v_mov_b32 v2, 0''')
    for k in range(10):
        a(f'v_writelane_b32 v2, {sr(sSTAMP + 2 * k)}, {k}')
    a(f'''v_writelane_b32 v2, {sr(sSPIN)}, 10
          s_getreg_b32 {sr(sT1)}, hwreg(HW_REG_XCC_ID)
          v_writelane_b32 v2, {sr(sT1)}, 11
          s_lshl_b32 {sr(sT0)}, s2, 2
          s_add_u32 {sr(sT0)}, {sr(sT0)}, {sr(sW)}
          s_lshl_b32 {sr(sT0)}, {sr(sT0)}, 7
          s_add_u32 {sr(sT0)}, {sr(sT0)}, {WS_ST}
          v_lshl_add_u32 v3, v1, 2, {sr(sT0)}
          s_mov_b64 exec, 0xffff
          buffer_store_dword v2, v3, {sr(rWS, 4)}, 0 offen''')
a('L_end:')
a('s_endpgm')

HEADER = open('cdna_kernels/' + NAME + '.s.ref').read().split('; Override launch')[0]
out = HEADER + f'''; One launch, 256 workgroups (one per CU), hand-offs through d_ws in 16-byte granules tagged with a per-launch epoch.
; @launch grid=(256,1,1) block=(256,1,1) lds={LDS_BYTES}
.amdgcn_target "amdgcn-amd-amdhsa--gfx950"
.text
.globl {NAME}_kernel
.p2align 8
.type {NAME}_kernel,@function
''' + a.text() + f'''.section .rodata,"a"
.p2align 6
.amdhsa_kernel {NAME}_kernel
  .amdhsa_next_free_vgpr 384
  .amdhsa_next_free_sgpr 102
  .amdhsa_accum_offset 256
  .amdhsa_group_segment_fixed_size 0
  .amdhsa_kernarg_size 104
  .amdhsa_user_sgpr_count 2
  .amdhsa_user_sgpr_kernarg_segment_ptr 1
  .amdhsa_system_sgpr_workgroup_id_x 1
.end_amdhsa_kernel
'''
dst = [x for x in sys.argv[1:] if not x.startswith('--')]
open(dst[0] if dst else 'cdna_kernels/' + NAME + '.s', 'w').write(out)
```
